```python
import torch

def _softmax(x, axis=-1):
    return torch.softmax(x, dim=axis)
def _gelu(x):
    return torch.nn.functional.gelu(x, approximate="tanh")
def _silu(x):
    return torch.nn.functional.silu(x)
def _sigmoid(x):
    return torch.sigmoid(x)
def _layernorm(x, axis=-1, eps=1e-5):
    m = x.mean(dim=axis, keepdim=True)
    v = x.var(dim=axis, keepdim=True, unbiased=False)
    return (x - m) / torch.sqrt(v + eps)
def _scatter_add(tgt, idx, src, axis=0):
    return tgt.clone().index_add_(axis, idx, src)
def _segment_sum(src, seg, n):
    out = torch.zeros((n,) + src.shape[1:], dtype=src.dtype)
    return out.index_add_(0, seg, src)
def _pad(x, pw):
    flat = tuple(v for pair in reversed(pw) for v in pair)
    return torch.nn.functional.pad(x, flat)

kernel_name = 'standalone__gqa_block_cached__near_ridge'

def setup_inputs():

    _w = (lambda a: (lambda t: t.to(torch.bfloat16) if t.is_floating_point() else t)(torch.as_tensor(a)))
    B, Sq, D = 32, 112, 640
    Hq, Hkv, Sk, Dh = 32, 32, 512, 128
    assert Hq % Hkv == 0, (Hq, Hkv)
    return {
        "x": _w((lambda *s: torch.randn(*s, dtype=torch.bfloat16) * 0.8)(B, Sq, D)),
        "k_cache": _w((lambda *s: torch.randn(*s, dtype=torch.bfloat16) * 0.8)(B, Hkv, Sk, Dh)),
        "v_cache": _w((lambda *s: torch.randn(*s, dtype=torch.bfloat16) * 0.05)(B, Hkv, Sk, Dh)),
        "wq": _w((lambda *s: torch.randn(*s, dtype=torch.bfloat16) * 0.8)(D, Hq * Dh) * (D ** -0.5)),
        "wo": _w((lambda *s: torch.randn(*s, dtype=torch.bfloat16) * 0.05)(Hq * Dh, D) * ((Hq * Dh) ** -0.5)),
    }

def reference(x, k_cache, v_cache, wq, wo):
    B, Sq, D = x.shape
    Hq, Dh = 32, 128
    Hkv = k_cache.shape[1]
    rep = Hq // Hkv
    q = (lambda x, *d: x.permute(*d))((x @ wq).reshape(B, Sq, Hq, Dh), 0, 2, 1, 3)
    k = (lambda x, n, axis: torch.repeat_interleave(x, n, dim=axis))(k_cache, rep, axis=1)
    v = (lambda x, n, axis: torch.repeat_interleave(x, n, dim=axis))(v_cache, rep, axis=1)
    scores = torch.einsum("bhqd,bhkd->bhqk", q, k) * (Dh ** -0.5)
    p = _softmax(scores, axis=-1)
    o = torch.einsum("bhqk,bhkd->bhqd", p, v)
    return (lambda x, *d: x.permute(*d))(o, 0, 2, 1, 3).reshape(B, Sq, Hq * Dh) @ wo
```

```python
import re

REG_RE = re.compile(r"^(-|abs\()?([vas])(\d+)\)?$")
RANGE_RE = re.compile(r"^([vas])\[(\d+):(\d+)\]$")

TRANS = ("v_exp_f32", "v_log_f32", "v_rcp_f32", "v_rsq_f32", "v_sqrt_f32", "v_sin_f32", "v_cos_f32")


def regs_of(op):
    op = op.strip()
    m = RANGE_RE.match(op)
    if m:
        return [(m.group(1), i) for i in range(int(m.group(2)), int(m.group(3)) + 1)]
    m = REG_RE.match(op)
    if m:
        return [(m.group(2), int(m.group(3)))]
    if op == "vcc":
        return [("s", "vcc")]
    if op == "m0":
        return [("s", "m0")]
    if op == "exec":
        return [("s", "exec")]
    return []


class Ins:
    __slots__ = ("text", "mn", "kind", "wr", "rd", "rdA", "rdC", "states", "passes", "lds", "wide_store")

    def __init__(self, text):
        self.text = text
        t = text.split(";")[0].strip()
        self.kind = "other"
        self.wr, self.rd, self.rdA, self.rdC = [], [], [], []
        self.states = 1
        self.passes = 0
        self.lds = False
        self.wide_store = []
        if not t or t.endswith(":") or t.startswith("."):
            self.kind = "label" if t.endswith(":") else "none"
            self.mn = ""
            self.states = 0
            return
        parts = t.split(None, 1)
        mn = parts[0]
        self.mn = mn
        rest = parts[1] if len(parts) > 1 else ""
        ops = [o.strip() for o in rest.split(",")]
        mods = []
        if ops and ops[-1]:
            sp = ops[-1].split()
            ops[-1] = sp[0]
            mods = sp[1:]
        if mn == "s_nop":
            self.kind = "nop"
            self.states = int(ops[0], 0) + 1
        elif mn.startswith("v_mfma"):
            self.kind = "mfma"
            self.passes = 4 if "16x16x32" in mn else 8
            self.wr = regs_of(ops[0])
            self.rdA = regs_of(ops[1]) + regs_of(ops[2])
            self.rdC = regs_of(ops[3])
            self.rd = self.rdA + self.rdC
        elif mn.startswith("v_"):
            self.kind = "trans" if mn.replace("_e32", "").replace("_e64", "") in TRANS else "valu"
            if mn.startswith("v_permlane") and "swap" in mn:
                self.kind = "permlane"
                self.wr = regs_of(ops[0]) + regs_of(ops[1])
                self.rd = list(self.wr)
            elif mn.startswith("v_cmp"):
                self.wr = regs_of(ops[0])
                for o in ops[1:]:
                    self.rd += regs_of(o)
            else:
                self.wr = regs_of(ops[0])
                for o in ops[1:]:
                    self.rd += regs_of(o)
                if mn.startswith("v_fmac") or mn.startswith("v_mac"):
                    self.rd += self.wr
                if mn.startswith("v_cndmask") and len(ops) == 3:
                    self.rd += [("s", "vcc")]
        elif mn.startswith("ds_"):
            self.kind = "ds"
            if mn.startswith("ds_read") or mn.startswith("ds_bpermute") or mn.startswith("ds_swizzle") or "_rtn" in mn:
                self.wr = regs_of(ops[0])
                for o in ops[1:]:
                    self.rd += regs_of(o)
            else:
                for o in ops:
                    self.rd += regs_of(o)
        elif mn in ("buffer_inv", "buffer_wbl2"):
            self.kind = "other"
        elif mn.startswith("buffer_") or mn.startswith("global_"):
            self.kind = "vmem"
            if "lds" in mods:
                self.lds = True
                for o in ops:
                    self.rd += regs_of(o)
                self.rd += [("s", "m0")]
            elif "load" in mn:
                self.wr = regs_of(ops[0])
                for o in ops[1:]:
                    self.rd += regs_of(o)
            else:
                for o in ops:
                    self.rd += regs_of(o)
                if "x4" in mn or "x3" in mn:
                    self.wide_store = regs_of(ops[0]) if mn.startswith("buffer_") else regs_of(ops[1])
                if "atomic" in mn and "sc0" in mods:
                    self.wr = regs_of(ops[0])
        elif mn.startswith("s_"):
            self.kind = "salu"
            if mn.startswith(("s_cmp", "s_cbranch", "s_branch", "s_waitcnt", "s_barrier", "s_endpgm", "s_sleep",
                              "s_setprio", "s_bitcmp")):
                for o in ops:
                    self.rd += regs_of(o)
                if mn.startswith("s_cbranch_vcc"):
                    self.rd += [("s", "vcc")]
            else:
                self.wr = regs_of(ops[0])
                for o in ops[1:]:
                    self.rd += regs_of(o)


class State:
    def __init__(self):
        self.pos = 0
        self.valu_w = {}
        self.trans_w = {}
        self.mfma_w = {}
        self.mfma_c = {}
        self.valu_sw = {}
        self.m0_w = -100
        self.store_r = {}

    def need(self, ins):
        n = 0

        def req(prev_pos, ws):
            nonlocal n
            have = self.pos - prev_pos - 1
            if have < ws:
                n = max(n, ws - have)

        k = ins.kind
        isvalu = k in ("valu", "trans", "permlane")
        if k == "mfma":
            for r in ins.rd:
                if r in self.valu_w:
                    req(self.valu_w[r], 2)
            for r in ins.rdA:
                if r in self.mfma_w:
                    p, ps, _ = self.mfma_w[r]
                    req(p, {4: 8, 8: 12}[ps])
            cset = tuple(ins.rdC)
            for r in ins.rdC:
                if r in self.mfma_w:
                    p, ps, d = self.mfma_w[r]
                    if d == cset and ps == ins.passes:
                        pass
                    else:
                        req(p, {4: 6, 8: 10}[ps])
            for r in ins.wr:
                if r in self.mfma_w:
                    p, ps, d = self.mfma_w[r]
                    if d != tuple(ins.wr):
                        req(p, {4: 6, 8: 10}[ps])
        if isvalu or k in ("ds", "vmem"):
            for r in ins.rd + ins.wr:
                if r in self.mfma_w:
                    p, ps, _ = self.mfma_w[r]
                    req(p, {4: 8, 8: 12}[ps])
        if isvalu:
            for r in ins.wr:
                if r in self.mfma_c:
                    p, ps = self.mfma_c[r]
                    req(p, {4: 3, 8: 7}[ps])
                if r in self.store_r:
                    req(self.store_r[r], 2)
            if k != "trans":
                for r in ins.rd:
                    if r in self.trans_w:
                        req(self.trans_w[r], 1)
            for r in ins.rd:
                if r[0] == "s" and r in self.valu_sw:
                    ws = 4 if ins.mn.startswith(("v_readlane", "v_writelane")) else 2
                    req(self.valu_sw[r], ws)
            if k == "permlane" or "dpp" in ins.text or "row_" in ins.text:
                for r in ins.rd:
                    if r in self.valu_w:
                        req(self.valu_w[r], 2)
            if ins.mn.startswith(("v_readfirstlane", "v_readlane")):
                for r in ins.rd:
                    if r in self.valu_w:
                        req(self.valu_w[r], 1)
        if k in ("ds", "vmem"):
            for r in ins.wr:
                if r in self.store_r:
                    req(self.store_r[r], 1)
        if k == "vmem":
            for r in ins.rd:
                if r[0] == "s" and r in self.valu_sw:
                    req(self.valu_sw[r], 5)
            if ins.lds:
                req(self.m0_w, 1)
        if k == "salu":
            for r in ins.rd:
                if r[0] == "s" and r in self.valu_sw:
                    req(self.valu_sw[r], 1)
        return n

    def apply(self, ins):
        k = ins.kind
        if ins.states == 0:
            return
        p = self.pos + ins.states - 1
        isvalu = k in ("valu", "trans", "permlane")
        for r in ins.wr:
            self.valu_w.pop(r, None)
            self.trans_w.pop(r, None)
            self.mfma_w.pop(r, None)
            self.valu_sw.pop(r, None)
        if isvalu:
            for r in ins.wr:
                if r[0] == "s":
                    self.valu_sw[r] = p
                else:
                    self.valu_w[r] = p
                    if k == "trans":
                        self.trans_w[r] = p
        if k == "mfma":
            d = tuple(ins.wr)
            for r in ins.wr:
                self.mfma_w[r] = (p, ins.passes, d)
            for r in ins.rdC:
                self.mfma_c[r] = (p, ins.passes)
        if k == "salu" and ("s", "m0") in ins.wr:
            self.m0_w = p
        for r in ins.wide_store:
            self.store_r[r] = p
        self.pos += ins.states


class Seg:
    def __init__(self, name):
        self.name = name
        self.ins = []

    def __call__(self, text):
        for line in text.split("\n"):
            if line.strip():
                self.ins.append(Ins(line.strip()))

    def extend(self, other):
        self.ins.extend(other.ins)

    def text(self):
        out = []
        for i in self.ins:
            out.append(i.text if i.kind == "label" or i.text.startswith(".") else "    " + i.text)
        return "\n".join(out)


def fix_path(segs, insert=True, verbose=False):
    st = State()
    total = 0
    for seg in segs:
        new = []
        for ins in seg.ins:
            n = st.need(ins)
            if n > 0:
                if not insert:
                    raise RuntimeError(f"hazard in {seg.name}: need {n} before '{ins.text}'")
                total += n
                if verbose:
                    print(f"  [{seg.name}] nop {n} before {ins.text}")
                while n > 0:
                    c = min(n, 16)
                    nop = Ins(f"s_nop {c-1}")
                    st.apply(nop)
                    new.append(nop)
                    n -= c
            st.apply(ins)
            new.append(ins)
        seg.ins = new
    return total


class VmQueue:
    def __init__(self):
        self.q = []

    def issue(self, tag):
        self.q.append(tag)

    def wait_for(self, tag):
        idx = max(i for i, t in enumerate(self.q) if t == tag)
        n = len(self.q) - 1 - idx
        return n
```

```python
import sys, re, struct, argparse
from asmlib import Seg, fix_path, VmQueue

KN = "standalone__gqa_block_cached__near_ridge_kernel"
KN2 = "gqa_oproj_kernel"
MFMA = "v_mfma_f32_16x16x32_bf16"


def f32bits(x):
    return struct.unpack("<I", struct.pack("<f", x))[0]


CSCALE = 1.4426950408889634 * (128 ** -0.5)

S_WAVE = 3
SRD_X, SRD_WQ, SRD_K, SRD_V, SRD_O = "s[4:7]", "s[8:11]", "s[12:15]", "s[16:19]", "s[20:23]"
S_R = [24, 25, 26, 27, 28]
S_CNT = 29
S_KOFF, S_VOFF = 30, 31
S_T = 32
S_C = 33
S_SEL0, S_SEL1 = 34, 35
S_WQOFF = 36
S_XOFF = 37
S_XLDS = 38
S_T2, S_T3 = 39, 40
S_BASE = 41
S_NC = 42
S_ST0 = 44

V_LANE = 1
V_DMA = 2
V_KRD = 6
V_VRD = 7
V_WQ = 8
V_XS = 9
V_XRD = 10
V_OST = 11
V_T = 12
V_RAW = 16
V_XF = 144
V_AF = 200
V_QF = 16
V_VF = 128
V_S = 160
V_P = 176
V_NM = 204
V_L = 211
V_BS = 218
V_U = 225
A_KF = 224
XBUF = 131072


def vr(b, n=4):
    return f"v[{b}:{b+n-1}]"


def ar(b, n=4):
    return f"a[{b}:{b+n-1}]"


def acc(j, t):
    return (j * 7 + t) * 4


def interleave(seg, mfmas, fillers):
    for s in fillers.get(-1, []):
        seg(s)
    for i, m in enumerate(mfmas):
        seg(m)
        for s in fillers.get(i, []):
            seg(s)


def spread(fillers, ops, lo, hi):
    n = hi - lo
    for k, op in enumerate(ops):
        idx = lo + (k * n) // len(ops)
        fillers.setdefault(idx, []).append(op)


def merge_min(bodies):
    ref = bodies[0]
    for b in bodies[1:]:
        assert len(b.ins) == len(ref.ins)
        for i, (x, y) in enumerate(zip(ref.ins, b.ins)):
            if x.text != y.text:
                mx = re.match(r"s_waitcnt vmcnt\((\d+)\)$", x.text)
                my = re.match(r"s_waitcnt vmcnt\((\d+)\)$", y.text)
                assert mx and my, (x.text, y.text)
                if int(my.group(1)) < int(mx.group(1)):
                    ref.ins[i] = y
    return ref


class K1:
    def __init__(self, opt):
        self.o = opt
        self.vq = VmQueue()
        self.kvflags = opt.kvflags

    def kv_half(self, which, soff_expr_reg, lds_reg, tag):
        srd = SRD_K if which == "K" else SRD_V
        out = [f"s_mov_b32 m0, s{lds_reg}"]
        for i in range(4):
            out.append(("vm", tag, f"buffer_load_dwordx4 v{V_DMA+i}, {srd}, s{soff_expr_reg} offen offset:{i*1024} {self.kvflags} lds"))
        return out

    def emit_list(self, lst):
        out = []
        for x in lst:
            if isinstance(x, tuple):
                if x[0] == "vm":
                    self.vq.issue(x[1])
                    out.append(x[2])
                elif x[0] == "wait":
                    out.append(f"s_waitcnt vmcnt({min(63, self.vq.wait_for(x[1]))})")
            else:
                out.append(x)
        return out

    def interleave(self, seg, mfmas, fillers):
        for s in self.emit_list(fillers.get(-1, [])):
            seg(s)
        for i, m in enumerate(mfmas):
            seg(m)
            for s in self.emit_list(fillers.get(i, [])):
                seg(s)

    def prologue(self):
        p = Seg("prologue")
        p(f"s_cmp_ge_u32 s2, 256\ns_cbranch_scc1 L_end1")
        if self.o.stamps:
            p(f"s_memrealtime s[{S_ST0}:{S_ST0+1}]")
        p("s_load_dwordx8 s[48:55], s[0:1], 0")
        p("s_load_dwordx2 s[56:57], s[0:1], 56")
        p(f"v_lshrrev_b32 v{V_T}, 6, v0")
        p(f"v_and_b32 v{V_LANE}, 63, v0")
        p(f"v_readfirstlane_b32 s{S_WAVE}, v{V_T}")
        p("s_and_b32 s58, s2, 7\ns_lshl_b32 s58, s58, 2\ns_lshr_b32 s59, s2, 6\ns_add_u32 s58, s58, s59")
        p(f"s_lshr_b32 s59, s2, 3\ns_and_b32 s59, s59, 7\ns_lshl_b32 s59, s59, 2\ns_add_u32 s59, s59, s{S_WAVE}")
        p("s_lshl_b32 s60, s58, 5\ns_add_u32 s60, s60, s59")
        n, g, t0, t1 = V_T, V_T + 1, V_T + 2, V_T + 3
        p(f"v_and_b32 v{n}, 15, v{V_LANE}")
        p(f"v_lshrrev_b32 v{g}, 4, v{V_LANE}")
        p(f"v_lshlrev_b32 v{V_WQ}, 16, v{g}")
        p(f"v_lshl_add_u32 v{V_WQ}, v{n}, 4, v{V_WQ}")
        p("s_movk_i32 s61, 0x78")
        p(f"v_lshrrev_b32 v{t0}, 4, v{V_LANE}")
        p(f"v_lshlrev_b32 v{t0}, 1, v{t0}")
        p(f"v_bfe_u32 v{t0}, s61, v{t0}, 2")
        p(f"v_and_b32 v{t1}, 3, v{V_LANE}")
        p(f"v_xor_b32 v{t0}, v{t0}, v{t1}")
        p(f"v_lshlrev_b32 v{t0}, 4, v{t0}")
        p(f"v_lshrrev_b32 v{t1}, 2, v{V_LANE}")
        p(f"s_lshl_b32 s62, s{S_WAVE}, 5")
        p(f"v_add_u32 v{t1}, s62, v{t1}")
        p(f"s_movk_i32 s62, 1280")
        p(f"v_mul_lo_u32 v{t1}, v{t1}, s62")
        p(f"v_add_u32 v{V_XS}, v{t0}, v{t1}")
        p(f"v_lshrrev_b32 v{t0}, 2, v{n}")
        p(f"v_lshlrev_b32 v{t0}, 1, v{t0}")
        p(f"v_bfe_u32 v{t0}, s61, v{t0}, 2")
        p(f"v_xor_b32 v{t0}, v{t0}, v{g}")
        p(f"v_lshlrev_b32 v{t0}, 4, v{t0}")
        p(f"v_lshl_add_u32 v{t0}, v{n}, 6, v{t0}")
        p(f"v_add_u32 v{V_XRD}, {XBUF}, v{t0}")
        p("s_waitcnt lgkmcnt(0)")
        p("s_mul_i32 s62, s58, 143360")
        p("s_add_u32 s4, s48, s62\ns_addc_u32 s5, s49, 0\ns_mov_b32 s6, 143360\ns_mov_b32 s7, 0x20000")
        p("s_lshl_b32 s62, s59, 8")
        p("s_add_u32 s8, s54, s62\ns_addc_u32 s9, s55, 0\ns_sub_u32 s10, 5242880, s62\ns_mov_b32 s11, 0x20000")
        p("s_lshl_b32 s62, s60, 17\ns_lshr_b32 s63, s60, 15")
        p("s_add_u32 s12, s50, s62\ns_addc_u32 s13, s51, s63\ns_mov_b32 s14, 131072\ns_mov_b32 s15, 0x20000")
        p("s_add_u32 s16, s52, s62\ns_addc_u32 s17, s53, s63\ns_mov_b32 s18, 131072\ns_mov_b32 s19, 0x20000")
        p("s_mul_i32 s62, s60, 28672")
        p("s_add_u32 s20, s56, s62\ns_addc_u32 s21, s57, 0\ns_mov_b32 s22, 28672\ns_mov_b32 s23, 0x20000")
        p(f"s_lshl_b32 s{S_BASE}, s{S_WAVE}, 15")
        p(f"s_lshl_b32 s{S_XLDS}, s{S_WAVE}, 11\ns_add_u32 s{S_XLDS}, s{S_XLDS}, {XBUF}")
        p(f"s_mov_b32 s{S_WQOFF}, 0\ns_mov_b32 s{S_XOFF}, 0")
        lst = []
        lst += self.x_dma(0)
        for s in range(3):
            lst += self.wq_loads(s)
            lst += self.x_dma(s + 1)
        for s in self.emit_list(lst):
            p(s)
        for i in range(4):
            p(f"v_add_u32 v{t0}, {4*i}, v{g}")
            p(f"v_and_b32 v{t1}, 7, v{t0}")
            p(f"v_lshlrev_b32 v{t1}, 1, v{t1}")
            p(f"v_lshrrev_b32 v{t0}, 3, v{t0}")
            p(f"v_or_b32 v{t0}, v{t0}, v{t1}")
            p(f"v_xor_b32 v{t0}, v{t0}, v{n}")
            p(f"v_lshlrev_b32 v{t0}, 4, v{t0}")
            p(f"v_lshl_add_u32 v{V_DMA+i}, v{g}, 8, v{t0}")
        p(f"v_and_b32 v{t1}, 7, v{n}")
        p(f"v_lshlrev_b32 v{t1}, 1, v{t1}")
        p(f"v_lshrrev_b32 v{t0}, 3, v{n}")
        p(f"v_or_b32 v{t0}, v{t0}, v{t1}")
        p(f"v_lshlrev_b32 v{t1}, 2, v{g}")
        p(f"v_xor_b32 v{t0}, v{t0}, v{t1}")
        p(f"v_lshlrev_b32 v{t0}, 4, v{t0}")
        p(f"v_lshl_add_u32 v{V_KRD}, v{n}, 8, v{t0}")
        m_, c_ = n, g
        p(f"v_lshrrev_b32 v{m_}, 2, v{V_LANE}")
        p(f"v_and_b32 v{c_}, 3, v{V_LANE}")
        p(f"v_and_b32 v{t1}, 7, v{m_}")
        p(f"v_lshlrev_b32 v{t1}, 1, v{t1}")
        p(f"v_lshrrev_b32 v{t0}, 3, v{m_}")
        p(f"v_or_b32 v{t0}, v{t0}, v{t1}")
        p(f"v_lshrrev_b32 v{t1}, 1, v{c_}")
        p(f"v_xor_b32 v{t0}, v{t0}, v{t1}")
        p(f"v_lshlrev_b32 v{t0}, 4, v{t0}")
        p(f"v_lshl_add_u32 v{t0}, v{m_}, 8, v{t0}")
        p(f"v_and_b32 v{t1}, 1, v{c_}")
        p(f"v_lshl_add_u32 v{V_VRD}, v{t1}, 3, v{t0}")
        p(f"v_lshlrev_b32 v{V_OST}, 4, v{V_LANE}")
        p(f"s_mov_b32 s{S_C}, {f32bits(CSCALE):#x}")
        p(f"s_mov_b32 s{S_NC}, {f32bits(-CSCALE):#x}")
        p(f"s_mov_b32 s{S_SEL0}, 0x05040100\ns_mov_b32 s{S_SEL1}, 0x07060302")
        for r in range(4):
            p(f"s_add_u32 s{S_R[r]}, s{S_BASE}, {r*8192}")
        p(f"s_lshl_b32 s{S_R[4]}, s{S_WAVE}, 13\ns_add_u32 s{S_R[4]}, s{S_R[4]}, {XBUF}")
        p(f"s_mov_b32 s{S_CNT}, 0")
        for i in range(224):
            p(f"v_accvgpr_write_b32 a{i}, 0")
        for s in self.emit_list([("wait", "x0")]):
            p(s)
        p("s_barrier")
        for t in range(7):
            p(f"ds_read_b128 {vr(V_XF + t*4)}, v{V_XRD} offset:{t*1024}")
        for s in self.emit_list([("wait", "wq0")]):
            p(s)
        for s in self.perms(0, 0):
            p(s)
        return p

    def x_dma(self, s):
        out = []
        for e in range(2):
            out.append(f"s_add_u32 m0, s{S_XLDS}, {(s % 4)*8192 + e*1024}")
            if e == 0:
                out.append(("vm", f"x{s}", f"buffer_load_dwordx4 v{V_XS}, {SRD_X}, s{S_XOFF} offen lds"))
            else:
                out.append(f"s_add_u32 s{S_T}, s{S_XOFF}, 20480")
                out.append(("vm", f"x{s}", f"buffer_load_dwordx4 v{V_XS}, {SRD_X}, s{S_T} offen lds"))
        out.append(f"s_add_u32 s{S_XOFF}, s{S_XOFF}, 64")
        return out

    def wq_loads(self, s):
        out = []
        base = V_RAW + (s % 4) * 32
        for i in range(8):
            out.append(("vm", f"wq{s}", f"buffer_load_dwordx4 {vr(base + i*4)}, v{V_WQ}, {SRD_WQ}, s{S_WQOFF} offen"))
            out.append(f"s_add_u32 s{S_WQOFF}, s{S_WQOFF}, {8192 if i < 7 else 8192*25}")
        return out

    def perms(self, s, j):
        base = V_RAW + (s % 4) * 32
        d = V_AF + (j & 1) * 4
        sel = S_SEL1 if (j & 1) else S_SEL0
        return [f"v_perm_b32 v{d+r}, v{base + (2*r+1)*4 + (j >> 1)}, v{base + (2*r)*4 + (j >> 1)}, s{sel}" for r in range(4)]

    def qstep(self, seg, s):
        NS = 20
        xf = V_XF + (s & 1) * 28
        xn = V_XF + ((s + 1) & 1) * 28
        mf = []
        for j in range(8):
            for t in range(7):
                mf.append(f"{MFMA} {ar(acc(j,t))}, {vr(V_AF+(j&1)*4)}, {vr(xf+t*4)}, {ar(acc(j,t))}")
        fl = {-1: ["s_waitcnt lgkmcnt(0)"]}
        for j in range(8):
            if j < 7:
                ops = self.perms(s, j + 1)
            elif s + 1 < NS:
                ops = [("wait", f"wq{s+1}")] + self.perms(s + 1, 0)
            else:
                ops = []
            if ops:
                spread(fl, ops, j * 7, j * 7 + 4)
        if s + 3 < NS:
            spread(fl, self.wq_loads(s + 3), 0, 16)
        mid = []
        if s + 1 < NS:
            mid += [("wait", f"x{s+1}"), "s_barrier"]
            for t in range(7):
                mid.append(f"ds_read_b128 {vr(xn + t*4)}, v{V_XRD} offset:{((s+1) % 4)*8192 + t*1024}")
        else:
            mid += ["s_barrier"]
        fl.setdefault(25, []).extend(mid)
        late = []
        if s + 4 < NS:
            late += self.x_dma(s + 4)
        if s < 16:
            it, ph = s // 4, s % 4
            which = "K" if ph < 2 else "V"
            srd = SRD_K if which == "K" else SRD_V
            if ph == 0:
                late += [f"s_and_b32 s{S_T2}, s{S_CNT}, 2", f"s_lshl_b32 s{S_T2}, s{S_T2}, 13",
                         f"s_and_b32 s{S_T3}, s{S_CNT}, 1", f"s_lshl_b32 s{S_T3}, s{S_T3}, 12",
                         f"s_add_u32 s{S_T2}, s{S_T2}, s{S_T3}", f"s_add_u32 s{S_T2}, s{S_T2}, s{S_BASE}",
                         f"s_lshl_b32 s{S_T3}, s{S_CNT}, 12"]
            late.append(f"s_add_u32 m0, s{S_T2}, {0 if which == 'K' else 8192}")
            for i in range(2):
                ii = (ph & 1) * 2 + i
                late.append(("vm", f"{which}{it >> 1}",
                             f"buffer_load_dwordx4 v{V_DMA+ii}, {srd}, s{S_T3} offen offset:{ii*1024} {self.kvflags} lds"))
        if s == NS - 1:
            late += self.tile_dma("K", 2, S_R[4], 16384)
        if late:
            spread(fl, late, 28, 48)
        self.interleave(seg, mf, fl)

    def tile_dma(self, which, blk, slotreg, off_imm=None):
        srd = SRD_K if which == "K" else SRD_V
        offreg = S_KOFF if which == "K" else S_VOFF
        out = []
        if off_imm is not None:
            out.append(f"s_mov_b32 s{offreg}, {off_imm}")
        for h in range(2):
            if h == 0:
                out.append(f"s_mov_b32 m0, s{slotreg}")
            else:
                out.append(f"s_add_u32 m0, s{slotreg}, 4096")
            for i in range(4):
                out.append(("vm", f"{which}{blk}",
                            f"buffer_load_dwordx4 v{V_DMA+i}, {srd}, s{offreg} offen offset:{i*1024} {self.kvflags} lds"))
            out.append(f"s_add_u32 s{offreg}, s{offreg}, 4096")
        return out

    def qphase(self):
        bodies = []
        for it in range(4):
            b = Seg(f"qbody{it}")
            for s in range(it * 4, it * 4 + 4):
                self.qstep(b, s)
            bodies.append(b)
        ref = merge_min(bodies)
        loop = Seg("qloop")
        loop("L_qloop:")
        loop.extend(ref)
        loop(f"s_add_u32 s{S_CNT}, s{S_CNT}, 1\ns_cmp_lt_u32 s{S_CNT}, 4\ns_cbranch_scc1 L_qloop")
        tail = Seg("qtail")
        for s in range(16, 20):
            self.qstep(tail, s)
        return loop, tail

    def convert(self):
        c = Seg("convert")
        for s in self.emit_list([("wait", "K0")] + self.k_reads(S_R[0])):
            c(s)
        c(f"s_mov_b32 s{S_VOFF}, 16384")
        c(f"s_mov_b32 s{S_KOFF}, 24576")
        k = 0
        for t in range(7):
            for kk in range(4):
                for rho in range(4):
                    t0 = V_U + (k % 4) * 2
                    k += 1
                    c(f"v_accvgpr_read_b32 v{t0}, a{acc(2*rho, t) + kk}")
                    c(f"v_accvgpr_read_b32 v{t0+1}, a{acc(2*rho+1, t) + kk}")
                    c(f"v_cvt_pk_bf16_f32 v{V_QF + (t*4+kk)*4 + rho}, v{t0}, v{t0+1}")
        return c

    def k_reads(self, slotreg):
        out = [f"v_add_u32 v{V_T}, s{slotreg}, v{V_KRD}"]
        for kk in range(1, 4):
            out.append(f"v_xor_b32 v{V_T+kk}, {kk << 4}, v{V_T}")
        for a in range(2):
            for kk in range(4):
                out.append(f"ds_read_b128 {ar(A_KF + (a*4+kk)*4)}, v{V_T+kk} offset:{a*4096}")
        return out

    def v_reads(self, slotreg):
        out = [f"v_add_u32 v{V_U+8}, s{slotreg}, v{V_VRD}"]
        for d in range(8):
            if d == 0:
                areg = V_U + 8
            else:
                areg = V_U + 9 + (d % 3)
                out.append(f"v_xor_b32 v{areg}, {d << 5}, v{V_U+8}")
            for a in range(2):
                out.append(f"ds_read_b64_tr_b16 {vr(V_VF + d*4 + a*2, 2)}, v{areg} offset:{a*4096}")
        return out

    def softmax_ops(self, t, mode):
        S = V_S + (t & 1) * 8
        nm = V_NM + t
        ops = []
        u = V_U
        if mode != "fast":
            ops += [f"v_max3_f32 v{u}, v{S}, v{S+1}, v{S+2}",
                    f"v_max3_f32 v{u}, v{u}, v{S+3}, v{S+4}",
                    f"v_max3_f32 v{u}, v{u}, v{S+5}, v{S+6}",
                    f"v_max_f32 v{u}, v{u}, v{S+7}",
                    f"v_mov_b32 v{u+1}, v{u}",
                    f"v_permlane16_swap_b32 v{u}, v{u+1}",
                    f"v_max_f32 v{u}, v{u}, v{u+1}",
                    f"v_mov_b32 v{u+1}, v{u}",
                    f"v_permlane32_swap_b32 v{u}, v{u+1}",
                    f"v_max_f32 v{u}, v{u}, v{u+1}"]
            if mode == "first":
                ops += [f"v_mul_f32 v{nm}, s{S_NC}, v{u}", f"v_mov_b32 v{V_L+t}, 0"]
            else:
                ops += [f"v_mul_f32 v{u}, s{S_NC}, v{u}",
                        f"v_min_f32 v{u}, v{u}, v{nm}",
                        f"v_sub_f32 v{u+1}, v{u}, v{nm}",
                        f"v_exp_f32 v{u+1}, v{u+1}",
                        f"v_mov_b32 v{nm}, v{u}",
                        f"v_mul_f32 v{V_L+t}, v{V_L+t}, v{u+1}"]
                for d in range(8):
                    for r in range(4):
                        a = acc(d, t) + r
                        tt = u + 2 + (r & 1)
                        ops += [f"v_accvgpr_read_b32 v{tt}, a{a}",
                                f"v_mul_f32 v{tt}, v{tt}, v{u+1}",
                                f"v_accvgpr_write_b32 a{a}, v{tt}"]
        fma = [f"v_fma_f32 v{S+i}, v{S+i}, s{S_C}, v{nm}" for i in range(8)]
        ex = [f"v_exp_f32 v{S+i}, v{S+i}" for i in range(8)]
        cv = [f"v_cvt_pk_bf16_f32 v{V_P + t*4 + r}, v{S+2*r}, v{S+2*r+1}" for r in range(4)]
        bs = V_BS + t
        a01 = f"v_add_f32 v{bs}, v{S}, v{S+1}"
        a23 = f"v_add_f32 v{u+4}, v{S+2}, v{S+3}"
        a45 = f"v_add_f32 v{u+5}, v{S+4}, v{S+5}"
        a67 = f"v_add_f32 v{u+6}, v{S+6}, v{S+7}"
        b1 = f"v_add_f32 v{bs}, v{bs}, v{u+4}"
        b2 = f"v_add_f32 v{u+5}, v{u+5}, v{u+6}"
        b3 = f"v_add_f32 v{bs}, v{bs}, v{u+5}"
        ops += fma[0:4] + ex[0:4] + fma[4:8] + [cv[0], a01, ex[4], cv[1], ex[5], a23, ex[6], ex[7], b1, cv[2], a45, cv[3], a67, b2, b3]
        return ops

    def phaseA(self, seg, mode, mem, blk):
        mf = []
        for t in range(7):
            S = V_S + (t & 1) * 8
            for a in range(2):
                for kk in range(4):
                    c = "0" if kk == 0 else vr(S + a * 4)
                    mf.append(f"{MFMA} {vr(S+a*4)}, {ar(A_KF+(a*4+kk)*4)}, {vr(V_QF+(t*4+kk)*4)}, {c}")
        fl = {}
        if mem:
            fl[-1] = ["s_waitcnt lgkmcnt(0)"]
            spread(fl, self.tile_dma("V", blk + 2, S_R[0]), 0, 8)
        for t in range(6):
            spread(fl, self.softmax_ops(t, mode), (t + 1) * 8, (t + 2) * 8)
        tail = self.softmax_ops(6, mode)
        if mem:
            vrd = [("wait", f"V{blk}")] + self.v_reads(S_R[1])
            merged = []
            i = 0
            for k, op in enumerate(vrd):
                merged.append(op)
                if i < len(tail):
                    merged.append(tail[i]); i += 1
            merged += tail[i:]
            tail = merged
        if mode == "fast":
            u = V_U + 7
            fl.setdefault(55, []).extend([f"v_max3_f32 v{u}, v{V_BS}, v{V_BS+1}, v{V_BS+2}",
                                          f"v_max3_f32 v{u}, v{u}, v{V_BS+3}, v{V_BS+4}"])
            tail += [f"v_max3_f32 v{u}, v{u}, v{V_BS+5}, v{V_BS+6}",
                     f"v_cmp_lt_f32 vcc, {f32bits(self.o.thresh):#x}, v{u}",
                     "s_cbranch_vccnz L_slow"]
        fl.setdefault(55, []).extend(tail)
        self.interleave(seg, mf, fl)

    def phaseB(self, seg, first, blk, waits_exact=True):
        mf = []
        fl = {}
        for t in range(7):
            for d in range(8):
                c = "0" if first else ar(acc(d, t))
                mf.append(f"{MFMA} {ar(acc(d,t))}, {vr(V_VF+d*4)}, {vr(V_P+t*4)}, {c}")
        fl[-1] = ["s_waitcnt lgkmcnt(14)"]
        for d in range(1, 8):
            fl.setdefault(d - 1, []).append(f"s_waitcnt lgkmcnt({14 - 2*d})")
        spread(fl, self.tile_dma("K", blk + 3, S_R[1]), 8, 20)
        spread(fl, [f"v_add_f32 v{V_L+t}, v{V_L+t}, v{V_BS+t}" for t in range(7)], 20, 34)
        spread(fl, [("wait", f"K{blk+1}")] + self.k_reads(S_R[2]), 36, 48)
        r = S_R
        rot = [f"s_mov_b32 s{S_T2}, s{r[0]}", f"s_mov_b32 s{S_T3}, s{r[1]}", f"s_mov_b32 s{r[0]}, s{r[2]}",
               f"s_mov_b32 s{r[1]}, s{r[3]}", f"s_mov_b32 s{r[2]}, s{r[4]}", f"s_mov_b32 s{r[3]}, s{S_T2}",
               f"s_mov_b32 s{r[4]}, s{S_T3}"]
        spread(fl, rot, 49, 56)
        self.interleave(seg, mf, fl)

    def epilogue(self):
        e = Seg("epilogue")
        u = V_U
        for t in range(7):
            l = V_L + t
            e(f"v_mov_b32 v{u}, v{l}")
            e(f"v_permlane16_swap_b32 v{l}, v{u}")
            e(f"v_add_f32 v{l}, v{l}, v{u}")
            e(f"v_mov_b32 v{u}, v{l}")
            e(f"v_permlane32_swap_b32 v{l}, v{u}")
            e(f"v_add_f32 v{l}, v{l}, v{u}")
            e(f"v_rcp_f32 v{l}, v{l}")
        k = 0
        for uu in range(4):
            for t in range(7):
                dst = V_QF + ((uu * 7 + t) % 8) * 4
                for half in range(2):
                    for pr in range(2):
                        t0 = V_S + (k % 4) * 2
                        k += 1
                        a = acc(2 * uu + half, t) + 2 * pr
                        e(f"v_accvgpr_read_b32 v{t0}, a{a}")
                        e(f"v_accvgpr_read_b32 v{t0+1}, a{a+1}")
                        e(f"v_mul_f32 v{t0}, v{t0}, v{V_L+t}")
                        e(f"v_mul_f32 v{t0+1}, v{t0+1}, v{V_L+t}")
                        e(f"v_cvt_pk_bf16_f32 v{dst + half*2 + pr}, v{t0}, v{t0+1}")
                off = (uu * 7 + t) * 1024
                e(f"s_movk_i32 s{S_T}, {off & ~4095}")
                e(f"buffer_store_dwordx4 {vr(dst)}, v{V_OST}, {SRD_O}, s{S_T} offen offset:{off & 4095} {self.o.ostflags}")
        if self.o.stamps:
            e(f"s_memrealtime s[{S_ST0+2}:{S_ST0+3}]")
            e("s_waitcnt lgkmcnt(0) vmcnt(0)")
            e("s_add_u32 s64, s56, 0x4000000\ns_addc_u32 s65, s57, 0\ns_mov_b32 s66, 65536\ns_mov_b32 s67, 0x20000")
            e(f"v_mov_b32 v16, s{S_ST0}\nv_mov_b32 v17, s{S_ST0+1}\nv_mov_b32 v18, s{S_ST0+2}\nv_mov_b32 v19, s{S_ST0+3}")
            e(f"s_lshl_b32 s62, s2, 2\ns_add_u32 s62, s62, s{S_WAVE}\ns_lshl_b32 s62, s62, 4\nv_mov_b32 v20, s62")
            e("buffer_store_dwordx4 v[16:19], v20, s[64:67], 0 offen")
        e("L_end1:\ns_endpgm")
        return e

    def build(self):
        pro = self.prologue()
        qloop, qtail = self.qphase()
        conv = self.convert()
        a0 = Seg("A0"); self.phaseA(a0, "first", True, 0)
        b0 = Seg("B0"); self.phaseB(b0, True, 0)
        b0(f"s_mov_b32 s{S_CNT}, 1")
        texts = []
        segs = []
        for blk in (1, 2, 3):
            la = Seg("LA"); la("L_loop:"); self.phaseA(la, "fast", True, blk)
            lb = Seg("LB"); lb("L_phaseB:"); self.phaseB(lb, False, blk)
            lb(f"s_add_u32 s{S_CNT}, s{S_CNT}, 1\ns_cmp_lt_u32 s{S_CNT}, 16\ns_cbranch_scc1 L_loop")
            texts.append(la.text() + lb.text())
            segs.append((la, lb))
        assert texts[1] == texts[2], "loop not uniform"
        la = merge_min([x[0] for x in segs])
        lb = merge_min([x[1] for x in segs])
        epi = self.epilogue()
        slow = Seg("slow"); slow("L_slow:"); slow("s_nop 7")
        self.phaseA(slow, "slow", False, 0)
        slow("s_nop 1\ns_branch L_phaseB")
        n = fix_path([pro, qloop, qtail, conv, a0, b0, la, lb, epi], verbose=self.o.verbose)
        n += fix_path([slow], verbose=self.o.verbose)
        for path in ([qloop, qloop, qtail], [lb, la, lb, la], [la, slow, lb], [b0, la], [lb, epi]):
            fix_path(path, insert=False)
        print(f"K1: inserted {n} wait states", file=sys.stderr)
        return [pro, qloop, qtail, conv, a0, b0, la, lb, epi, slow]


class K2:
    NSET = 8
    DIST = 5
    V_OF = 16
    V_WS = 2
    V_ARD = 7
    V_OLD = 8
    A_AF = 144
    SLOT = 5120

    def __init__(self, opt):
        self.o = opt
        self.vq = VmQueue()

    emit_list = K1.emit_list
    interleave = K1.interleave

    def loads(self, s):
        out = []
        st = s % self.NSET
        for t in range(7):
            off = t * 1024
            if t == 4:
                out.append("s_add_u32 s30, s30, 4096")
            out.append(("vm", f"s{s}", f"buffer_load_dwordx4 {vr(self.V_OF + st*28 + t*4)}, v{self.V_OLD}, s[4:7], s30 offen offset:{off & 4095}"))
        out.append("s_add_u32 s30, s30, 3072")
        for i in range(5):
            out.append(f"s_add_u32 m0, s28, {st*self.SLOT + i*1024}")
            out.append(("vm", f"s{s}", f"buffer_load_dwordx4 v{self.V_WS+i}, s[8:11], s31 offen lds"))
        out.append("s_add_u32 s31, s31, 40960")
        return out

    def areads(self, s):
        st = s % self.NSET
        out = []
        for tau in range(5):
            for e in range(2):
                out.append(f"ds_read_b64_tr_b16 {ar(self.A_AF + (s & 1)*20 + tau*4 + e*2, 2)}, v{self.V_ARD} offset:{st*self.SLOT + e*2560 + tau*32}")
        return out

    def step(self, seg, s):
        st = s % self.NSET
        mf = []
        for tau in range(5):
            for t in range(7):
                a = (tau * 7 + t) * 4
                mf.append(f"{MFMA} {ar(a)}, {ar(self.A_AF + (s&1)*20 + tau*4)}, {vr(self.V_OF + st*28 + t*4)}, {ar(a)}")
        fl = {-1: ["s_waitcnt lgkmcnt(0)"]}
        spread(fl, self.loads(s + self.DIST), 0, 20)
        spread(fl, [("wait", f"s{s+1}")] + self.areads(s + 1), 21, 33)
        self.interleave(seg, mf, fl)

    def build(self):
        p = Seg("k2pro")
        p("s_cmp_ge_u32 s2, 256\ns_cbranch_scc1 L_end2")
        p("s_load_dwordx4 s[48:51], s[0:1], 32")
        p("s_load_dwordx2 s[56:57], s[0:1], 56")
        p("v_lshrrev_b32 v12, 6, v0")
        p("v_and_b32 v1, 63, v0")
        p("v_readfirstlane_b32 s3, v12")
        p("s_and_b32 s58, s2, 7\ns_lshl_b32 s58, s58, 2\ns_lshr_b32 s59, s2, 6\ns_add_u32 s58, s58, s59")
        p("s_lshr_b32 s59, s2, 3\ns_and_b32 s59, s59, 7")
        p(f"v_lshlrev_b32 v{self.V_OLD}, 4, v1")
        p("s_movk_i32 s61, 6554\ns_movk_i32 s62, 1120")
        for i in range(5):
            p(f"v_add_u32 v12, {64*i}, v1")
            p("v_mul_lo_u32 v13, v12, s61")
            p("v_lshrrev_b32 v13, 16, v13")
            p("v_mul_lo_u32 v13, v13, s62")
            p(f"v_lshl_add_u32 v{self.V_WS+i}, v12, 4, v13")
        p("v_lshrrev_b32 v12, 2, v1")
        p("v_mul_u32_u24 v12, 160, v12")
        p("v_and_b32 v13, 3, v1")
        p("v_lshl_add_u32 v12, v13, 3, v12")
        p(f"s_mul_i32 s28, s3, {self.NSET*self.SLOT}")
        p(f"v_add_u32 v{self.V_ARD}, s28, v12")
        p("s_waitcnt lgkmcnt(0)")
        p("s_lshl_b32 s62, s58, 2\ns_add_u32 s62, s62, s3\ns_mul_i32 s62, s62, 229376")
        p("s_add_u32 s4, s56, s62\ns_addc_u32 s5, s57, 0\ns_mov_b32 s6, 229376\ns_mov_b32 s7, 0x20000")
        p("s_mul_i32 s62, s3, 1310720\ns_mul_i32 s63, s59, 160\ns_add_u32 s62, s62, s63")
        p("s_add_u32 s8, s48, s62\ns_addc_u32 s9, s49, 0\ns_sub_u32 s10, 1310720, s63\ns_mov_b32 s11, 0x20000")
        p("s_mul_i32 s62, s58, 143360\ns_add_u32 s62, s62, s63")
        p("s_add_u32 s12, s50, s62\ns_addc_u32 s13, s51, 0\ns_sub_u32 s14, 143360, s63\ns_mov_b32 s15, 0x20000")
        p("s_mov_b32 s30, 0\ns_mov_b32 s31, 0\ns_mov_b32 s29, 0")
        lst = []
        for s in range(self.DIST):
            lst += self.loads(s)
        for x in self.emit_list(lst):
            p(x)
        for i in range(140):
            p(f"v_accvgpr_write_b32 a{i}, 0")
        for x in self.emit_list([("wait", "s0")] + self.areads(0)):
            p(x)
        bodies = []
        for it in range(2):
            b = Seg(f"k2body{it}")
            for s in range(it * 8, it * 8 + 8):
                self.step(b, s)
            bodies.append(b)
        assert bodies[0].text() == bodies[1].text()
        loop = Seg("k2loop")
        loop("L_k2loop:")
        loop.extend(bodies[0])
        loop("s_add_u32 s29, s29, 1\ns_cmp_lt_u32 s29, 4\ns_cbranch_scc1 L_k2loop")
        e = Seg("k2epi")
        e("s_waitcnt vmcnt(0) lgkmcnt(0)")
        e("s_barrier")
        e("s_mul_i32 s62, s3, 35840")
        e(f"v_add_u32 v12, s62, v{self.V_OLD}")
        for i in range(35):
            e(f"ds_write_b128 v12, {ar(i*4)} offset:{i*1024}")
        e("s_waitcnt lgkmcnt(0)")
        e("s_barrier")
        e("v_and_b32 v13, 15, v1")
        e("v_lshrrev_b32 v14, 4, v1")
        e("v_mul_u32_u24 v13, 1280, v13")
        e("v_lshl_add_u32 v13, v14, 3, v13")
        e("s_lshl_b32 s62, s3, 10")
        e(f"v_add_u32 v12, s62, v{self.V_OLD}")
        e("v_add_u32 v9, 35840, v12")
        e("v_add_u32 v10, 71680, v12")
        e("v_add_u32 v11, 107520, v12")
        for k in range(9):
            b = 16 + (k % 2) * 16
            for pw in range(4):
                base = ["v12", "v9", "v10", "v11"][pw]
                e(f"ds_read_b128 {vr(b + pw*4)}, {base} offset:{k*4096}")
            e(f"s_add_u32 s62, s3, {4*k}")
            e("s_mul_i32 s63, s62, 37\ns_lshr_b32 s63, s63, 8")
            e("s_mul_i32 s64, s63, 7\ns_sub_u32 s64, s62, s64")
            e("s_mul_i32 s64, s64, 20480\ns_lshl_b32 s63, s63, 5\ns_add_u32 s64, s64, s63")
            if k == 8:
                e("s_cmp_eq_u32 s3, 3\ns_cbranch_scc1 L_end2")
            e("s_waitcnt lgkmcnt(0)")
            for r in range(4):
                e(f"v_add_f32 v{b+r}, v{b+r}, v{b+4+r}")
                e(f"v_add_f32 v{b+8+r}, v{b+8+r}, v{b+12+r}")
            for r in range(4):
                e(f"v_add_f32 v{b+r}, v{b+r}, v{b+8+r}")
            e(f"v_cvt_pk_bf16_f32 v{b+4}, v{b}, v{b+1}")
            e(f"v_cvt_pk_bf16_f32 v{b+5}, v{b+2}, v{b+3}")
            e(f"buffer_store_dwordx2 {vr(b+4, 2)}, v13, s[12:15], s64 offen")
        e("L_end2:\ns_endpgm")
        n = fix_path([p, loop, e], verbose=self.o.verbose)
        fix_path([loop, loop, e], insert=False)
        print(f"K2: inserted {n} wait states", file=sys.stderr)
        return [p, loop, e]


HEADER = """; Kernarg layout for this problem (64 bytes, ptrs only, base s[0:1]):
"""


def kd(name, vgpr=512, sgpr=96, accum=256):
    return f""".amdhsa_kernel {name}
  .amdhsa_next_free_vgpr {vgpr}
  .amdhsa_next_free_sgpr {sgpr}
  .amdhsa_accum_offset {accum}
  .amdhsa_group_segment_fixed_size 0
  .amdhsa_kernarg_size 64
  .amdhsa_user_sgpr_count 2
  .amdhsa_user_sgpr_kernarg_segment_ptr 1
  .amdhsa_system_sgpr_workgroup_id_x 1
.end_amdhsa_kernel
"""


def main():
    ap = argparse.ArgumentParser()
    ap.add_argument("-o", default="standalone__gqa_block_cached__near_ridge.s")
    ap.add_argument("--kvflags", default="nt")
    ap.add_argument("--ostflags", default="")
    ap.add_argument("--thresh", type=float, default=16384.0)
    ap.add_argument("--stamps", action="store_true")
    ap.add_argument("--verbose", action="store_true")
    o = ap.parse_args()
    k1 = K1(o).build()
    k2 = K2(o).build()
    out = [HEADER.rstrip("\n")]
    out.append(f"; @launch kernel={KN} grid=(256,1,1) block=(256,1,1) lds=163840")
    out.append(f"; @launch kernel={KN2} grid=(256,1,1) block=(256,1,1) lds=163840")
    out.append('.amdgcn_target "amdgcn-amd-amdhsa--gfx950"\n.text')
    for name, segs in ((KN, k1), (KN2, k2)):
        out.append(f".globl {name}\n.p2align 8\n.type {name},@function\n{name}:")
        for s in segs:
            out.append(f"; ---- {s.name}")
            out.append(s.text())
    out.append('.section .rodata,"a"\n.p2align 6')
    out.append(kd(KN))
    out.append(".p2align 6")
    out.append(kd(KN2))
    open(o.o, "w").write("\n".join(out))


main()
```

```python
import sys, re, struct, argparse
from asmlib import Seg, fix_path, VmQueue

KN = "standalone__gqa_block_cached__near_ridge_kernel"
MFMA = "v_mfma_f32_16x16x32_bf16"


def f32bits(x):
    return struct.unpack("<I", struct.pack("<f", x))[0]


CSCALE = 1.4426950408889634 * (128 ** -0.5)

S_WAVE = 3
SRD_X, SRD_WQ, SRD_K, SRD_V, SRD_O = "s[4:7]", "s[8:11]", "s[12:15]", "s[16:19]", "s[20:23]"
S_R = [24, 25, 26, 27, 28]
S_CNT = 29
S_KOFF, S_VOFF = 30, 31
S_T = 32
S_C = 33
S_SEL0, S_SEL1 = 34, 35
S_WQOFF = 36
S_XOFF = 37
S_XLDS = 38
S_T2, S_T3 = 39, 40
S_ROLE = 41
S_NC = 42
S_G = 43
S_PF = [44, 48, 52, 56]
S_PFL = [60, 61, 62, 63]
SRD_WT = "s[64:67]"
SRD_FL = "s[68:71]"
SRD_OUT = "s[72:75]"
SRD_AUX = "s[76:79]"
P_X, P_K, P_V, P_WQ, P_WO, P_OUT, P_DBG, P_WS = 80, 82, 84, 86, 88, 90, 92, 94
S_B, S_J, S_H, S_PAIR = 96, 97, 98, 99
S_OOFF, S_WOFF, S_SPIN, S_CALL = 44, 45, 46, 47
S_ROT, S_PH = 36, 37

V_LANE = 1
V_DMA = 2
V_KRD = 6
V_VRD = 7
V_XS = 9
V_XRD = 10
V_OST = 11
V_T = 12
V_RAW = 16
V_XF = 176
V_AF = 232
V_WQ8 = 240
V_QF = 16
V_VF = 128
V_S = 160
V_P = 176
V_NM = 204
V_L = 211
V_BS = 218
V_U = 225
A_KF = 224
V_STAMP = 255
SLOT = 8192
XBUF = 16 * SLOT

WS_O = 0
WS_WT = 32 << 20
WS_FL = 48 << 20
WS_ST = 64 << 20


def vr(b, n=4):
    return f"v[{b}:{b+n-1}]"


def ar(b, n=4):
    return f"a[{b}:{b+n-1}]"


def sr(b, n=4):
    return f"s[{b}:{b+n-1}]"


def acc(j, t):
    return (j * 7 + t) * 4


def spread(fillers, ops, lo, hi):
    n = hi - lo
    for k, op in enumerate(ops):
        idx = lo + (k * n) // len(ops)
        fillers.setdefault(idx, []).append(op)


def merge_min(bodies):
    ref = bodies[0]
    for b in bodies[1:]:
        assert len(b.ins) == len(ref.ins)
        for i, (x, y) in enumerate(zip(ref.ins, b.ins)):
            if x.text != y.text:
                mx = re.match(r"s_waitcnt vmcnt\((\d+)\)$", x.text)
                my = re.match(r"s_waitcnt vmcnt\((\d+)\)$", y.text)
                assert mx and my, (x.text, y.text)
                if int(my.group(1)) < int(mx.group(1)):
                    ref.ins[i] = y
    return ref


class Gen:
    def __init__(self, opt):
        self.o = opt
        self.vq = VmQueue()
        self.kvflags = opt.kvflags
        self.nlabel = 0

    def label(self, base):
        self.nlabel += 1
        return f"L_{base}{self.nlabel}"

    def stamp(self, seg, i):
        if self.o.stamps:
            seg(f"s_mem{'' if self.o.stamps == 2 else 'real'}time s[100:101]")
            seg("s_waitcnt lgkmcnt(0)")
            seg(f"v_writelane_b32 v{V_STAMP}, s100, {2*i}")
            seg(f"v_writelane_b32 v{V_STAMP}, s101, {2*i+1}")

    def emit_list(self, lst):
        out = []
        for x in lst:
            if isinstance(x, tuple):
                if x[0] == "vm":
                    self.vq.issue(x[1])
                    out.append(x[2])
                elif x[0] == "wait":
                    out.append(f"s_waitcnt vmcnt({min(63, self.vq.wait_for(x[1]))})")
            else:
                out.append(x)
        return out

    def put(self, seg, lst):
        for s in self.emit_list(lst):
            seg(s)

    def interleave(self, seg, mfmas, fillers):
        self.put(seg, fillers.get(-1, []))
        for i, m in enumerate(mfmas):
            seg(m)
            self.put(seg, fillers.get(i, []))

    @staticmethod
    def srd(p, d, base, off_lo, off_hi, nrec):
        p(f"s_add_u32 s{d}, s{base}, {off_lo}\ns_addc_u32 s{d+1}, s{base+1}, {off_hi}")
        p(f"s_mov_b32 s{d+2}, {nrec}\ns_mov_b32 s{d+3}, 0x20000")

    def prologue(self):
        p = Seg("prologue")
        p("s_cmp_ge_u32 s2, 256\ns_cbranch_scc1 L_end")
        p(f"s_load_dwordx16 s[{P_X}:{P_X+15}], s[0:1], 0")
        p(f"v_lshrrev_b32 v{V_T}, 6, v0")
        p(f"v_and_b32 v{V_LANE}, 63, v0")
        p(f"v_readfirstlane_b32 s{S_WAVE}, v{V_T}")
        if self.o.stamps:
            p(f"v_mov_b32 v{V_STAMP}, 0")
        p(f"s_and_b32 s{S_B}, s2, 7\ns_lshl_b32 s{S_B}, s{S_B}, 2\ns_lshr_b32 s{S_T}, s2, 6\ns_add_u32 s{S_B}, s{S_B}, s{S_T}")
        p(f"s_lshr_b32 s{S_J}, s2, 3\ns_and_b32 s{S_J}, s{S_J}, 7")
        p(f"s_lshr_b32 s{S_ROLE}, s{S_WAVE}, 1")
        p(f"s_lshl_b32 s{S_H}, s{S_ROLE}, 4\ns_lshl_b32 s{S_T}, s{S_J}, 1\ns_add_u32 s{S_H}, s{S_H}, s{S_T}")
        p(f"s_and_b32 s{S_T}, s{S_WAVE}, 1\ns_add_u32 s{S_H}, s{S_H}, s{S_T}")
        p(f"s_lshl_b32 s{S_PAIR}, s{S_B}, 5\ns_add_u32 s{S_PAIR}, s{S_PAIR}, s{S_H}")
        n, g, t0, t1 = V_T, V_T + 1, V_T + 2, V_T + 3
        p(f"v_and_b32 v{n}, 15, v{V_LANE}")
        p(f"v_lshrrev_b32 v{g}, 4, v{V_LANE}")
        p(f"v_lshlrev_b32 v{t0}, 16, v{g}")
        p(f"v_lshl_add_u32 v{V_WQ8}, v{n}, 4, v{t0}")
        for i in range(1, 8):
            p(f"v_add_u32 v{V_WQ8+i}, {i*8192}, v{V_WQ8}")
        p(f"s_movk_i32 s{S_T2}, 0x78")
        p(f"v_lshlrev_b32 v{t0}, 1, v{g}")
        p(f"v_bfe_u32 v{t0}, s{S_T2}, v{t0}, 2")
        p(f"v_and_b32 v{t1}, 3, v{V_LANE}")
        p(f"v_xor_b32 v{t0}, v{t0}, v{t1}")
        p(f"v_lshlrev_b32 v{t0}, 4, v{t0}")
        p(f"v_lshrrev_b32 v{t1}, 2, v{V_LANE}")
        p(f"s_lshl_b32 s{S_T}, s{S_WAVE}, 5")
        p(f"v_add_u32 v{t1}, s{S_T}, v{t1}")
        p(f"v_mul_u32_u24 v{t1}, 1280, v{t1}")
        p(f"v_add_u32 v{V_XS}, v{t0}, v{t1}")
        p(f"s_lshl_b32 s{S_XLDS}, s{S_WAVE}, 11\ns_add_u32 s{S_XLDS}, s{S_XLDS}, {XBUF}")
        p(f"s_and_b32 s{S_T}, s2, 7\ns_mul_i32 s{S_T}, s{S_T}, {self.o.rotb}")
        p(f"s_mul_i32 s{S_T3}, s{S_T}, 3277\ns_lshr_b32 s{S_T3}, s{S_T3}, 16\ns_mul_i32 s{S_T3}, s{S_T3}, 20\ns_sub_u32 s{S_T}, s{S_T}, s{S_T3}")
        p(f"s_lshl_b32 s{S_WQOFF}, s{S_T}, 18\ns_lshl_b32 s{S_XOFF}, s{S_T}, 6")
        p(f"s_mul_i32 s{S_T3}, s{S_B}, 143360")
        p(f"s_lshl_b32 s{S_T}, s{S_H}, 8")
        p("s_waitcnt lgkmcnt(0)")
        self.srd(p, 4, P_X, f"s{S_T3}", 0, 143360)
        p(f"s_add_u32 s8, s{P_WQ}, s{S_T}\ns_addc_u32 s9, s{P_WQ+1}, 0\ns_sub_u32 s10, 5242880, s{S_T}\ns_mov_b32 s11, 0x20000")
        lst = []
        lst += self.x_dma(0)
        for s in range(self.o.nraw - 1):
            lst += self.wq_loads(s)
            if s < 3:
                lst += self.x_dma(s + 1)
        self.put(p, lst)
        self.stamp(p, 0)
        p(f"s_lshl_b32 s{S_T}, s{S_PAIR}, 17\ns_lshr_b32 s{S_T3}, s{S_PAIR}, 15")
        self.srd(p, 12, P_K, f"s{S_T}", f"s{S_T3}", 0 if self.o.nokv else 131072)
        self.srd(p, 16, P_V, f"s{S_T}", f"s{S_T3}", 0 if self.o.nokv else 131072)
        p(f"s_mul_i32 s{S_T}, s{S_PAIR}, 28672")
        self.srd(p, 20, P_WS, f"s{S_T}", 0, 28672)
        self.srd(p, 68, P_WS, WS_FL, 0, 8192)
        p(f"s_lshl_b32 s{S_T}, s{S_PAIR}, 2\ns_lshr_b32 s{S_T3}, s{S_PAIR}, 4\ns_lshl_b32 s{S_T3}, s{S_T3}, 6\ns_add_u32 s{S_T}, s{S_T}, s{S_T3}")
        p(f"v_mov_b32 v{t0}, 0\nv_mov_b32 v{t1}, s{S_T}")
        self.put(p, [("vm", "zf", f"buffer_store_dword v{t0}, v{t1}, {SRD_FL}, 0 offen sc1")])
        def rot_of(dst, pair, tmp):
            p(f"s_mul_i32 s{dst}, s{pair}, {self.o.ra}\ns_lshr_b32 s{tmp}, s{pair}, {self.o.rs}\ns_mul_i32 s{tmp}, s{tmp}, {self.o.rb}")
            p(f"s_add_u32 s{dst}, s{dst}, s{tmp}\ns_and_b32 s{dst}, s{dst}, 15\ns_lshl_b32 s{dst}, s{dst}, 13")
        pp, rp, o1, o2 = S_R[0], S_R[1], S_R[2], S_R[3]
        p(f"s_lshl_b32 s{S_T}, s{S_ROLE}, 4\ns_sub_u32 s{pp}, s{S_PAIR}, s{S_T}")
        rot_of(rp, pp, S_T)
        p(f"s_lshl_b32 s{S_T2}, s{S_ROLE}, 14\ns_add_u32 s{o1}, s{rp}, s{S_T2}\ns_add_u32 s{o2}, s{o1}, 8192")
        p(f"s_and_b32 s{o1}, s{o1}, 0x1ffff\ns_and_b32 s{o2}, s{o2}, 0x1ffff")
        p(f"s_lshr_b32 s{S_T3}, s{pp}, 15\ns_lshl_b32 s{S_T}, s{pp}, 17")
        p(f"s_add_u32 s{o1}, s{o1}, s{S_T}\ns_add_u32 s{o2}, s{o2}, s{S_T}")
        self.srd(p, S_PF[0], P_K, f"s{o1}", f"s{S_T3}", 8192)
        self.srd(p, S_PF[1], P_V, f"s{o1}", f"s{S_T3}", 8192)
        self.srd(p, S_PF[2], P_K, f"s{o2}", f"s{S_T3}", 8192)
        self.srd(p, S_PF[3], P_V, f"s{o2}", f"s{S_T3}", 8192)
        rot_of(S_VOFF, S_PAIR, S_T)
        p(f"s_add_u32 s{o1}, s12, s{S_VOFF}\ns_addc_u32 s{o2}, s13, 0")
        p(f"s_cmp_eq_u32 s{S_ROLE}, 1")
        p(f"s_cselect_b32 s{S_PF[3]}, s{o1}, s{S_PF[3]}\ns_cselect_b32 s{S_PF[3]+1}, s{o2}, s{S_PF[3]+1}")
        p(f"s_and_b32 s{S_T}, s{S_WAVE}, 1")
        p(f"s_mul_i32 s{S_T2}, s{S_T}, {5*SLOT}")
        p(f"s_lshl_b32 s{S_T3}, s{S_T}, 14\ns_add_u32 s{S_T3}, s{S_T3}, {10*SLOT}")
        p(f"s_add_u32 s{S_R[0]}, s{S_T2}, {2*SLOT}\ns_add_u32 s{S_R[1]}, s{S_T2}, {3*SLOT}\ns_add_u32 s{S_R[2]}, s{S_T2}, {4*SLOT}")
        p(f"s_lshl_b32 s{S_R[3]}, s{S_T}, 13\ns_add_u32 s{S_R[3]}, s{S_R[3]}, {14*SLOT}")
        p(f"s_add_u32 s{S_R[4]}, s{S_T3}, {SLOT}")
        p(f"s_add_u32 s{S_CNT}, s{S_T2}, {SLOT}")
        p(f"s_cmp_eq_u32 s{S_ROLE}, 1")
        p(f"s_cselect_b32 s{S_PFL[0]}, s{S_R[0]}, s{S_T3}")
        p(f"s_cselect_b32 s{S_PFL[1]}, s{S_R[1]}, s{S_R[4]}")
        p(f"s_cselect_b32 s{S_PFL[2]}, s{S_R[2]}, s{S_T2}")
        p(f"s_cselect_b32 s{S_PFL[3]}, s{S_R[3]}, s{S_CNT}")
        p(f"s_mul_i32 s{S_CNT}, s{S_T}, {6*SLOT}\ns_add_u32 s{S_CNT}, s{S_CNT}, {10*SLOT}")
        p(f"s_cmp_eq_u32 s{S_ROLE}, 1")
        p(f"s_cselect_b32 s{S_R[0]}, s{S_PFL[3]}, s{S_PFL[0]}")
        p(f"s_cselect_b32 s{S_R[1]}, s{S_CNT}, s{S_PFL[1]}")
        p(f"s_add_u32 s{S_CNT}, s{S_CNT}, {SLOT}\ns_cmp_eq_u32 s{S_ROLE}, 1")
        p(f"s_cselect_b32 s{S_R[2]}, s{S_CNT}, s{S_T2}")
        p(f"s_add_u32 s{S_R[3]}, s{S_R[2]}, {SLOT}\ns_add_u32 s{S_R[4]}, s{S_R[2]}, {2*SLOT}")
        p(f"s_cmp_eq_u32 s{S_ROLE}, 1\ns_cselect_b32 s{S_G}, 99, {self.o.go}")
        p(f"s_movk_i32 s{S_T2}, 0x78")
        p(f"v_lshrrev_b32 v{t0}, 2, v{n}")
        p(f"v_lshlrev_b32 v{t0}, 1, v{t0}")
        p(f"v_bfe_u32 v{t0}, s{S_T2}, v{t0}, 2")
        p(f"v_xor_b32 v{t0}, v{t0}, v{g}")
        p(f"v_lshlrev_b32 v{t0}, 4, v{t0}")
        p(f"v_lshl_add_u32 v{t0}, v{n}, 6, v{t0}")
        p(f"v_add_u32 v{V_XRD}, {XBUF}, v{t0}")
        for i in range(4):
            p(f"v_add_u32 v{t0}, {4*i}, v{g}")
            p(f"v_and_b32 v{t1}, 7, v{t0}")
            p(f"v_lshlrev_b32 v{t1}, 1, v{t1}")
            p(f"v_lshrrev_b32 v{t0}, 3, v{t0}")
            p(f"v_or_b32 v{t0}, v{t0}, v{t1}")
            p(f"v_xor_b32 v{t0}, v{t0}, v{n}")
            p(f"v_lshlrev_b32 v{t0}, 4, v{t0}")
            p(f"v_lshl_add_u32 v{V_DMA+i}, v{g}, 8, v{t0}")
        p(f"v_and_b32 v{t1}, 7, v{n}")
        p(f"v_lshlrev_b32 v{t1}, 1, v{t1}")
        p(f"v_lshrrev_b32 v{t0}, 3, v{n}")
        p(f"v_or_b32 v{t0}, v{t0}, v{t1}")
        p(f"v_lshlrev_b32 v{t1}, 2, v{g}")
        p(f"v_xor_b32 v{t0}, v{t0}, v{t1}")
        p(f"v_lshlrev_b32 v{t0}, 4, v{t0}")
        p(f"v_lshl_add_u32 v{V_KRD}, v{n}, 8, v{t0}")
        m_, c_ = n, g
        p(f"v_lshrrev_b32 v{m_}, 2, v{V_LANE}")
        p(f"v_and_b32 v{c_}, 3, v{V_LANE}")
        p(f"v_and_b32 v{t1}, 7, v{m_}")
        p(f"v_lshlrev_b32 v{t1}, 1, v{t1}")
        p(f"v_lshrrev_b32 v{t0}, 3, v{m_}")
        p(f"v_or_b32 v{t0}, v{t0}, v{t1}")
        p(f"v_lshrrev_b32 v{t1}, 1, v{c_}")
        p(f"v_xor_b32 v{t0}, v{t0}, v{t1}")
        p(f"v_lshlrev_b32 v{t0}, 4, v{t0}")
        p(f"v_lshl_add_u32 v{t0}, v{m_}, 8, v{t0}")
        p(f"v_and_b32 v{t1}, 1, v{c_}")
        p(f"v_lshl_add_u32 v{V_VRD}, v{t1}, 3, v{t0}")
        p(f"v_lshlrev_b32 v{V_OST}, 4, v{V_LANE}")
        p(f"s_mov_b32 s{S_C}, {f32bits(CSCALE):#x}")
        p(f"s_mov_b32 s{S_NC}, {f32bits(-CSCALE):#x}")
        p(f"s_mov_b32 s{S_SEL0}, 0x05040100\ns_mov_b32 s{S_SEL1}, 0x07060302")
        self.put(p, [("wait", "x0")])
        p("s_barrier")
        for t in range(7):
            p(f"ds_read_b128 {vr(V_XF + t*4)}, v{V_XRD} offset:{t*1024}")
        self.put(p, [("wait", "wq0")])
        for s in self.perms(0, 0):
            p(s)
        self.stamp(p, 1)
        return p

    def x_dma(self, s):
        out = []
        for e in range(2):
            out.append(f"s_add_u32 m0, s{S_XLDS}, {(s % 4)*SLOT + e*1024}")
            if e == 0:
                out.append(f"s_add_u32 s{S_T}, s{S_XOFF}, 20480")
                out.append(("vm", f"x{s}", f"buffer_load_dwordx4 v{V_XS}, {SRD_X}, s{S_XOFF} offen lds"))
            else:
                out.append(f"s_add_u32 s{S_XOFF}, s{S_XOFF}, 64")
                out.append(("vm", f"x{s}", f"buffer_load_dwordx4 v{V_XS}, {SRD_X}, s{S_T} offen lds"))
        out += [f"s_cmp_ge_u32 s{S_XOFF}, 1280", f"s_cselect_b32 s{S_XOFF}, 0, s{S_XOFF}"]
        return out

    def wq_loads(self, s):
        out = []
        base = V_RAW + (s % self.o.nraw) * 32
        for i in range(8):
            out.append(("vm", f"wq{s}", f"buffer_load_dwordx4 {vr(base + i*4)}, v{V_WQ8+i}, {SRD_WQ}, s{S_WQOFF} offen"))
        out += [f"s_add_u32 s{S_WQOFF}, s{S_WQOFF}, {8192*32}",
                f"s_cmp_ge_u32 s{S_WQOFF}, 5242880", f"s_cselect_b32 s{S_WQOFF}, 0, s{S_WQOFF}"]
        return out

    def perms(self, s, j):
        base = V_RAW + (s % self.o.nraw) * 32
        d = V_AF + (j & 1) * 4
        sel = S_SEL1 if (j & 1) else S_SEL0
        return [f"v_perm_b32 v{d+r}, v{base + (2*r+1)*4 + (j >> 1)}, v{base + (2*r)*4 + (j >> 1)}, s{sel}" for r in range(4)]

    def pf_dma(self, k):
        q, i = k // 8, k % 8
        out = [f"s_add_u32 m0, s{S_PFL[q]}, {(i // 4) * 4096}"]
        so = "0" if i < 4 else f"s{S_KOFF}"
        out.append(("vm", f"pf{q}", f"buffer_load_dwordx4 v{V_DMA + i % 4}, {sr(S_PF[q])}, {so} offen offset:{(i % 4)*1024} {self.kvflags} lds"))
        return out

    def qstep(self, seg, s, pf):
        NS = 20
        xf = V_XF + (s & 1) * 28
        xn = V_XF + ((s + 1) & 1) * 28
        mf = []
        for j in range(8):
            for t in range(7):
                c = "0" if s == 0 else ar(acc(j, t))
                mf.append(f"{MFMA} {ar(acc(j,t))}, {vr(V_AF+(j&1)*4)}, {vr(xf+t*4)}, {c}")
        fl = {-1: ["s_waitcnt lgkmcnt(0)"]}
        for j in range(8):
            if j < 7:
                ops = self.perms(s, j + 1)
            elif s + 1 < NS:
                ops = [("wait", f"wq{s+1}")] + self.perms(s + 1, 0)
            else:
                ops = []
            if ops:
                spread(fl, ops, j * 7, j * 7 + 4 + (1 if j == 7 else 0))
        groups = []
        if s + self.o.nraw - 1 < NS:
            w = self.wq_loads(s + self.o.nraw - 1)
            groups += [[x] for x in w[:7]] + [w[7:]]
        after = []
        if s + 4 < NS:
            x = self.x_dma(s + 4)
            after += [x[:3], x[3:]]
        for k in pf:
            after.append(self.pf_dma(k))
        BAR = 20
        mid = []
        if s + 1 < NS:
            mid += [("wait", f"x{s+1}"), "s_barrier"]
        else:
            mid += ["s_barrier"]
        pre_n = min(len(groups), 4)
        pos_pre = [2, 6, 11, 16][:pre_n]
        for gq, pos in zip(groups[:pre_n], pos_pre):
            for k, op in enumerate(gq):
                fl.setdefault(pos + k, []).append(op)
        fl.setdefault(BAR, []).extend(mid)
        if s + 1 < NS:
            for t in range(7):
                fl.setdefault(BAR + 1 + t + (t + 3) // 4, []).append(
                    f"ds_read_b128 {vr(xn + t*4)}, v{V_XRD} offset:{((s+1) % 4)*SLOT + t*1024}")
        rest = after[:2] + groups[pre_n:] + after[2:]
        if rest:
            lo, hi = BAR + 5, 53
            last = 0
            for k, gq in enumerate(rest):
                pos = lo + (k * (hi - lo)) // len(rest)
                for kk, op in enumerate(gq):
                    last = max(last, min(55, pos + (kk + 1) // 2))
                    fl.setdefault(last, []).append(op)
        self.interleave(seg, mf, fl)

    def qphase(self):
        q = Seg("qphase")
        q(f"s_movk_i32 s{S_KOFF}, 4096")
        lo, hi = self.o.pflo, self.o.pfhi
        sched = {s: [] for s in range(20)}
        for k in range(32):
            sched[lo + (k * (hi - lo)) // 32].append(k)
        for s in range(20):
            self.qstep(q, s, sched[s])
        return q

    def convert(self):
        c = Seg("convert")
        self.stamp(c, 2)
        k = 0
        for t in range(7):
            for kk in range(4):
                for rho in range(4):
                    t0 = V_U + (k % 4) * 2
                    k += 1
                    c(f"v_accvgpr_read_b32 v{t0}, a{acc(2*rho, t) + kk}")
                    c(f"v_accvgpr_read_b32 v{t0+1}, a{acc(2*rho+1, t) + kk}")
                    c(f"v_cvt_pk_bf16_f32 v{V_QF + (t*4+kk)*4 + rho}, v{t0}, v{t0+1}")
        c(f"s_mov_b32 s{S_ROT}, s{S_VOFF}")
        c(f"s_movk_i32 s{S_KOFF}, 8192\ns_cmp_eq_u32 s{S_ROLE}, 1")
        c(f"s_cselect_b32 s{S_VOFF}, 0, 24576\ns_cselect_b32 s{S_KOFF}, s{S_KOFF}, 32768")
        c("s_waitcnt vmcnt(0)")
        c(f"s_cbranch_scc1 L_late")
        return c

    def late_setup(self):
        l = Seg("late")
        l("L_late:")
        l("s_barrier")
        self.put(l, self.tile_dma("V", 0, S_R[1]) + self.tile_dma("K", 1, S_R[2]))
        l(f"s_lshl_b32 s{S_T}, s2, 1\ns_and_b32 s{S_T2}, s{S_WAVE}, 1\ns_add_u32 s{S_T}, s{S_T}, s{S_T2}")
        l(f"s_lshr_b32 s{S_T2}, s{S_T}, 2\ns_and_b32 s{S_T3}, s{S_T}, 3")
        l(f"s_mul_i32 s{S_T}, s{S_T2}, 40960\ns_mul_i32 s{S_CNT}, s{S_T3}, 320\ns_add_u32 s{S_T}, s{S_T}, s{S_CNT}")
        l(f"s_add_u32 s76, s{P_WO}, s{S_T}\ns_addc_u32 s77, s{P_WO+1}, 0\ns_sub_u32 s78, 40960, s{S_CNT}\ns_mov_b32 s79, 0x20000")
        a, b = V_VF, V_VF + 1
        l(f"s_movk_i32 s{S_T}, 3277")
        for i in range(10):
            l(f"v_add_u32 v{a}, {64*i}, v{V_LANE}")
            l(f"v_mul_lo_u32 v{b}, v{a}, s{S_T}")
            l(f"v_lshrrev_b32 v{b}, 16, v{b}")
            l(f"v_mul_u32_u24 v{b}, 960, v{b}")
            l(f"v_lshl_add_u32 v{V_VF+2+i}, v{a}, 4, v{b}")
            l(f"s_add_u32 m0, s{S_R[3]}, {i*1024}")
            self.put(l, [("vm", "wo", f"buffer_load_dwordx4 v{V_VF+2+i}, {SRD_AUX}, 0 offen lds")])
        l(f"v_lshrrev_b32 v{a}, 2, v{V_LANE}")
        l(f"v_mul_u32_u24 v{a}, 320, v{a}")
        l(f"v_and_b32 v{b}, 3, v{V_LANE}")
        l(f"v_lshl_add_u32 v{a}, v{b}, 3, v{a}")
        l(f"v_add_u32 v{a}, s{S_R[3]}, v{a}")
        l(f"s_lshl_b32 s{S_T}, s{S_T3}, 8\ns_add_u32 s{S_T}, s{S_T}, s{S_T2}\ns_mul_i32 s{S_T}, s{S_T}, 5120")
        l(f"s_add_u32 s{S_T}, s{S_T}, {WS_WT}")
        l("s_waitcnt vmcnt(0)")
        self.srd(l, 76, P_WS, f"s{S_T}", 0, 128 * 5120 + 5120)
        D = V_S
        for tp in range(10):
            for e in range(2):
                l(f"ds_read_b64_tr_b16 {vr(D + tp*4 + e*2, 2)}, v{a} offset:{e*5120 + tp*32}")
        l(f"s_mov_b32 s{S_T}, {128*5120}")
        l("s_waitcnt lgkmcnt(0)")
        for tp in range(10):
            so = "0" if tp < 5 else f"s{S_T}"
            tau = tp % 5
            if tau == 4:
                l(f"v_add_u32 v{b}, 4096, v{V_OST}")
                l(f"buffer_store_dwordx4 {vr(D + tp*4)}, v{b}, {SRD_AUX}, {so} offen sc1")
            else:
                l(f"buffer_store_dwordx4 {vr(D + tp*4)}, v{V_OST}, {SRD_AUX}, {so} offen offset:{tau*1024} sc1")
        l("s_waitcnt vmcnt(0)")
        self.srd(l, 76, P_DBG, 0, 0, 256)
        l(f"v_mov_b32 v{a}, 1\nv_mov_b32 v{b}, 0")
        l("s_mov_b64 exec, 1")
        l(f"buffer_atomic_add v{a}, v{b}, {SRD_AUX}, 0 offen sc1")
        l("s_mov_b64 exec, -1")
        self.vq.q = []
        self.put(l, self.tile_dma("V", 1, S_R[3]) + self.tile_dma("K", 2, S_R[4]))
        l("s_waitcnt vmcnt(16)")
        l("s_barrier")
        l("s_branch L_block0")
        return l

    def tile_dma(self, which, blk, slotreg):
        srd = SRD_K if which == "K" else SRD_V
        offreg = S_KOFF if which == "K" else S_VOFF
        out = [f"s_add_u32 s{S_PH}, s{offreg}, s{S_ROT}", f"s_and_b32 s{S_PH}, s{S_PH}, 0x1ffff",
               f"s_cmp_ge_u32 s{offreg}, 0x20000", f"s_cselect_b32 s{S_PH}, s{offreg}, s{S_PH}"]
        for h in range(2):
            out.append(f"s_mov_b32 m0, s{slotreg}" if h == 0 else f"s_add_u32 m0, s{slotreg}, 4096")
            if h == 0:
                out.append(f"s_add_u32 s{offreg}, s{offreg}, 8192")
            else:
                out.append(f"s_add_u32 s{S_PH}, s{S_PH}, 4096")
            for i in range(4):
                out.append(("vm", f"{which}{blk}",
                            f"buffer_load_dwordx4 v{V_DMA+i}, {srd}, s{S_PH} offen offset:{i*1024} {self.kvflags} lds"))
        return out

    def k_reads(self, slotreg):
        out = [f"v_add_u32 v{V_T}, s{slotreg}, v{V_KRD}"]
        for kk in range(1, 4):
            out.append(f"v_xor_b32 v{V_T+kk}, {kk << 4}, v{V_T}")
        for a in range(2):
            for kk in range(4):
                out.append(f"ds_read_b128 {ar(A_KF + (a*4+kk)*4)}, v{V_T+kk} offset:{a*4096}")
        return out

    def v_reads(self, slotreg):
        out = [f"v_add_u32 v{V_U+8}, s{slotreg}, v{V_VRD}"]
        for d in range(8):
            if d == 0:
                areg = V_U + 8
            else:
                areg = V_U + 9 + (d % 3)
                out.append(f"v_xor_b32 v{areg}, {d << 5}, v{V_U+8}")
            for a in range(2):
                out.append(f"ds_read_b64_tr_b16 {vr(V_VF + d*4 + a*2, 2)}, v{areg} offset:{a*4096}")
        return out

    def softmax_ops(self, t, mode):
        S = V_S + (t & 1) * 8
        nm = V_NM + t
        ops = []
        u = V_U
        if mode != "fast":
            ops += [f"v_max3_f32 v{u}, v{S}, v{S+1}, v{S+2}",
                    f"v_max3_f32 v{u}, v{u}, v{S+3}, v{S+4}",
                    f"v_max3_f32 v{u}, v{u}, v{S+5}, v{S+6}",
                    f"v_max_f32 v{u}, v{u}, v{S+7}",
                    f"v_mov_b32 v{u+1}, v{u}",
                    f"v_permlane16_swap_b32 v{u}, v{u+1}",
                    f"v_max_f32 v{u}, v{u}, v{u+1}",
                    f"v_mov_b32 v{u+1}, v{u}",
                    f"v_permlane32_swap_b32 v{u}, v{u+1}",
                    f"v_max_f32 v{u}, v{u}, v{u+1}"]
            if mode == "first":
                ops += [f"v_mul_f32 v{nm}, s{S_NC}, v{u}", f"v_mov_b32 v{V_L+t}, 0"]
            else:
                ops += [f"v_mul_f32 v{u}, s{S_NC}, v{u}",
                        f"v_min_f32 v{u}, v{u}, v{nm}",
                        f"v_sub_f32 v{u+1}, v{u}, v{nm}",
                        f"v_exp_f32 v{u+1}, v{u+1}",
                        f"v_mov_b32 v{nm}, v{u}",
                        f"v_mul_f32 v{V_L+t}, v{V_L+t}, v{u+1}"]
                for d in range(8):
                    for r in range(4):
                        a = acc(d, t) + r
                        tt = u + 2 + (r & 1)
                        ops += [f"v_accvgpr_read_b32 v{tt}, a{a}",
                                f"v_mul_f32 v{tt}, v{tt}, v{u+1}",
                                f"v_accvgpr_write_b32 a{a}, v{tt}"]
        fma = [f"v_fma_f32 v{S+i}, v{S+i}, s{S_C}, v{nm}" for i in range(8)]
        ex = [f"v_exp_f32 v{S+i}, v{S+i}" for i in range(8)]
        cv = [f"v_cvt_pk_bf16_f32 v{V_P + t*4 + r}, v{S+2*r}, v{S+2*r+1}" for r in range(4)]
        bs = V_BS + t
        a01 = f"v_add_f32 v{bs}, v{S}, v{S+1}"
        a23 = f"v_add_f32 v{u+4}, v{S+2}, v{S+3}"
        a45 = f"v_add_f32 v{u+5}, v{S+4}, v{S+5}"
        a67 = f"v_add_f32 v{u+6}, v{S+6}, v{S+7}"
        b1 = f"v_add_f32 v{bs}, v{bs}, v{u+4}"
        b2 = f"v_add_f32 v{u+5}, v{u+5}, v{u+6}"
        b3 = f"v_add_f32 v{bs}, v{bs}, v{u+5}"
        ops += fma[0:4] + ex[0:4] + fma[4:8] + [cv[0], a01, ex[4], cv[1], ex[5], a23, ex[6], ex[7], b1, cv[2], a45, cv[3], a67, b2, b3]
        return ops

    def guarded(self, ops):
        lab = self.label("skip")
        return [f"s_cmp_eq_u32 s{S_ROLE}, 0", f"s_cbranch_scc1 {lab}"] + ops + [f"{lab}:"]

    def phaseA(self, seg, mode, mem, blk):
        mf = []
        for t in range(7):
            S = V_S + (t & 1) * 8
            for a in range(2):
                for kk in range(4):
                    c = "0" if kk == 0 else vr(S + a * 4)
                    mf.append(f"{MFMA} {vr(S+a*4)}, {ar(A_KF+(a*4+kk)*4)}, {vr(V_QF+(t*4+kk)*4)}, {c}")
        fl = {}
        if mem:
            fl[-1] = ["s_waitcnt lgkmcnt(0)"]
            d = self.tile_dma("V", blk + 2, S_R[0])
            if mode == "first":
                fl[0] = self.guarded(d)
            else:
                spread(fl, d, 0, 8)
        for t in range(6):
            spread(fl, self.softmax_ops(t, mode), (t + 1) * 8, (t + 2) * 8)
        tail = self.softmax_ops(6, mode)
        if mem:
            vrd = ([] if mode == "first" else ["s_waitcnt vmcnt(32)"]) + self.v_reads(S_R[1])
            merged = []
            i = 0
            for k, op in enumerate(vrd):
                merged.append(op)
                if i < len(tail):
                    merged.append(tail[i]); i += 1
            merged += tail[i:]
            tail = merged
        if mode == "fast":
            u = V_U + 7
            fl.setdefault(55, []).extend([f"v_max3_f32 v{u}, v{V_BS}, v{V_BS+1}, v{V_BS+2}",
                                          f"v_max3_f32 v{u}, v{u}, v{V_BS+3}, v{V_BS+4}"])
            tail += [f"v_max3_f32 v{u}, v{u}, v{V_BS+5}, v{V_BS+6}",
                     f"v_cmp_lt_f32 vcc, {f32bits(self.o.thresh):#x}, v{u}",
                     "s_cbranch_vccnz L_slow"]
        fl.setdefault(55, []).extend(tail)
        self.interleave(seg, mf, fl)

    def phaseB(self, seg, first, blk):
        mf = []
        fl = {}
        for t in range(7):
            for d in range(8):
                c = "0" if first else ar(acc(d, t))
                mf.append(f"{MFMA} {ar(acc(d,t))}, {vr(V_VF+d*4)}, {vr(V_P+t*4)}, {c}")
        fl[-1] = ["s_waitcnt lgkmcnt(14)"]
        for d in range(1, 8):
            fl.setdefault(d - 1, []).append(f"s_waitcnt lgkmcnt({14 - 2*d})")
        d = self.tile_dma("K", blk + 3, S_R[1])
        if first:
            fl.setdefault(8, []).extend(self.guarded(d))
        else:
            spread(fl, d, 8, 20)
        spread(fl, [f"v_add_f32 v{V_L+t}, v{V_L+t}, v{V_BS+t}" for t in range(7)], 20, 34)
        spread(fl, ([] if first else ["s_waitcnt vmcnt(32)"]) + self.k_reads(S_R[2]), 36, 48)
        r = S_R
        rot = [f"s_mov_b32 s{S_T2}, s{r[0]}", f"s_mov_b32 s{S_T3}, s{r[1]}", f"s_mov_b32 s{r[0]}, s{r[2]}",
               f"s_mov_b32 s{r[1]}, s{r[3]}", f"s_mov_b32 s{r[2]}, s{r[4]}", f"s_mov_b32 s{r[3]}, s{S_T2}",
               f"s_mov_b32 s{r[4]}, s{S_T3}"]
        spread(fl, rot, 49, 56)
        self.interleave(seg, mf, fl)

    def epilogue(self):
        e = Seg("epilogue")
        self.stamp(e, 4)
        u = V_U
        for t in range(7):
            l = V_L + t
            e(f"v_mov_b32 v{u}, v{l}")
            e(f"v_permlane16_swap_b32 v{l}, v{u}")
            e(f"v_add_f32 v{l}, v{l}, v{u}")
            e(f"v_mov_b32 v{u}, v{l}")
            e(f"v_permlane32_swap_b32 v{l}, v{u}")
            e(f"v_add_f32 v{l}, v{l}, v{u}")
            e(f"v_rcp_f32 v{l}, v{l}")
        k = 0
        for uu in range(4):
            for t in range(7):
                dst = V_QF + ((uu * 7 + t) % 8) * 4
                for half in range(2):
                    for pr in range(2):
                        t0 = V_S + (k % 4) * 2
                        k += 1
                        a = acc(2 * uu + half, t) + 2 * pr
                        e(f"v_accvgpr_read_b32 v{t0}, a{a}")
                        e(f"v_accvgpr_read_b32 v{t0+1}, a{a+1}")
                        e(f"v_mul_f32 v{t0}, v{t0}, v{V_L+t}")
                        e(f"v_mul_f32 v{t0+1}, v{t0+1}, v{V_L+t}")
                        e(f"v_cvt_pk_bf16_f32 v{dst + half*2 + pr}, v{t0}, v{t0+1}")
                off = (uu * 7 + t) * 1024
                e(f"s_movk_i32 s{S_T}, {off & ~4095}")
                e(f"buffer_store_dwordx4 {vr(dst)}, v{V_OST}, {SRD_O}, s{S_T} offen offset:{off & 4095} sc1")
        for i in range(140):
            e(f"v_accvgpr_write_b32 a{i}, 0")
        e(f"s_lshl_b32 s{S_T}, s{S_PAIR}, 2\ns_lshr_b32 s{S_T3}, s{S_PAIR}, 4\ns_lshl_b32 s{S_T3}, s{S_T3}, 6\ns_add_u32 s{S_T}, s{S_T}, s{S_T3}")
        e(f"v_mov_b32 v{V_T}, 1\nv_mov_b32 v{V_T+1}, s{S_T}")
        e("s_waitcnt vmcnt(0)")
        e(f"buffer_store_dword v{V_T}, v{V_T+1}, {SRD_FL}, 0 offen sc1")
        e(f"s_mul_i32 s{S_T}, s{S_B}, {128*7168}")
        self.srd(e, 20, P_WS, f"s{S_T}", 0, 128 * 7168)
        e(f"s_mul_i32 s{S_T}, s{S_J}, {128*5120}\ns_add_u32 s{S_T}, s{S_T}, {WS_WT}")
        self.srd(e, 64, P_WS, f"s{S_T}", 0, 128 * 5120)
        self.srd(e, 76, P_DBG, 0, 0, 256)
        self.stamp(e, 5)
        e(f"v_mov_b32 v{V_T+1}, 0\ns_mov_b32 s{S_SPIN}, 0")
        e("L_pollw:")
        e(f"buffer_load_dword v{V_T}, v{V_T+1}, {SRD_AUX}, 0 offen sc1")
        e("s_waitcnt vmcnt(0)")
        e(f"v_cmp_gt_u32 vcc, 512, v{V_T}")
        e("s_cbranch_vccz L_pollw_done")
        e(f"s_sleep 8\ns_add_u32 s{S_SPIN}, s{S_SPIN}, 1\ns_cmp_lt_u32 s{S_SPIN}, {self.o.spin}\ns_cbranch_scc1 L_pollw")
        e("L_pollw_done:")
        if self.o.acq:
            e("buffer_inv sc1\ns_waitcnt vmcnt(0)")
        e(f"s_lshl_b32 s{S_CALL}, s{S_WAVE}, 1\ns_add_u32 s{S_T}, s{S_WAVE}, 4")
        e(f"s_cmp_eq_u32 s{S_ROLE}, 1\ns_cselect_b32 s{S_CALL}, s{S_T}, s{S_CALL}")
        return e

    NSET = 6
    DIST = 5

    def os_o(self, st, t):
        return vr(16 + st * 28 + t * 4)

    def os_a(self, st, tau):
        return ar(140 + st * 20 + tau * 4) if st < 5 else vr(184 + tau * 4)

    def os_wloads(self, s):
        st = s % self.NSET
        out = []
        for tau in range(5):
            if tau < 4:
                out.append(("vm", f"w{s}", f"buffer_load_dwordx4 {self.os_a(st, tau)}, v{V_OST}, {SRD_WT}, s{S_WOFF} offen offset:{tau*1024} {self.o.osflags}"))
            else:
                out.append(("vm", f"w{s}", f"buffer_load_dwordx4 {self.os_a(st, tau)}, v{V_T+2}, {SRD_WT}, s{S_WOFF} offen {self.o.osflags}"))
        out.append(f"s_add_u32 s{S_WOFF}, s{S_WOFF}, 5120")
        return out

    def os_oloads(self, s):
        st = s % self.NSET
        out = []
        for t in range(7):
            va = V_OST if t < 4 else V_T + 2
            out.append(("vm", f"o{s}", f"buffer_load_dwordx4 {self.os_o(st, t)}, v{va}, {SRD_O}, s{S_OOFF} offen offset:{(t % 4)*1024} {self.o.osflags}"))
        out.append(f"s_add_u32 s{S_OOFF}, s{S_OOFF}, 7168")
        return out

    def ostage(self):
        o = Seg("ostage")
        self.vq.q = []
        o("L_ostage:")
        o(f"s_mul_i32 s{S_OOFF}, s{S_CALL}, {16*7168}\ns_mul_i32 s{S_WOFF}, s{S_CALL}, {16*5120}")
        o(f"v_add_u32 v{V_T+2}, 4096, v{V_OST}")
        for s in range(self.DIST):
            self.put(o, self.os_wloads(s))
        o(f"s_lshl_b32 s{S_T}, s{S_B}, 8\ns_lshr_b32 s{S_T2}, s{S_CALL}, 2\ns_lshl_b32 s{S_T2}, s{S_T2}, 7\ns_add_u32 s{S_T}, s{S_T}, s{S_T2}")
        o(f"s_and_b32 s{S_T2}, s{S_CALL}, 3\ns_lshl_b32 s{S_T2}, s{S_T2}, 4\ns_add_u32 s{S_T}, s{S_T}, s{S_T2}")
        o(f"v_and_b32 v{V_T+1}, 3, v{V_LANE}\nv_lshlrev_b32 v{V_T+1}, 2, v{V_T+1}\ns_mov_b32 s{S_SPIN}, 0")
        o("L_pollo:")
        o(f"buffer_load_dword v{V_T}, v{V_T+1}, {SRD_FL}, s{S_T} offen sc1")
        o("s_waitcnt vmcnt(0)")
        o(f"v_cmp_ne_u32 vcc, 1, v{V_T}")
        o("s_cbranch_vccz L_pollo_done")
        o(f"s_sleep 4\ns_add_u32 s{S_SPIN}, s{S_SPIN}, 1\ns_cmp_lt_u32 s{S_SPIN}, {self.o.spin}\ns_cbranch_scc1 L_pollo")
        o("L_pollo_done:")
        if self.o.acq:
            o("buffer_inv sc1\ns_waitcnt vmcnt(0)")
        for s in range(self.DIST):
            self.put(o, self.os_oloads(s))
        for s in range(16):
            st = s % self.NSET
            mf = []
            for tau in range(5):
                for t in range(7):
                    a = (tau * 7 + t) * 4
                    mf.append(f"{MFMA} {ar(a)}, {self.os_a(st, tau)}, {self.os_o(st, t)}, {ar(a)}")
            need = f"o{s}" if s < self.DIST else f"w{s}"
            fl = {-1: [("wait", need)]}
            if s + self.DIST < 16:
                spread(fl, self.os_oloads(s + self.DIST) + self.os_wloads(s + self.DIST), 0, 34)
            self.interleave(o, mf, fl)
        o(f"s_cmp_ge_u32 s{S_CALL}, 4\ns_cbranch_scc1 L_final")
        o(f"s_add_u32 s{S_T}, s{S_WAVE}, 4\ns_add_u32 s{S_T2}, s{S_CALL}, 1\ns_bitcmp1_b32 s{S_CALL}, 0\ns_cselect_b32 s{S_CALL}, s{S_T}, s{S_T2}")
        if self.o.stamps:
            lab = self.label("ns")
            o(f"s_cbranch_scc0 {lab}")
            self.stamp(o, 6)
            o(f"{lab}:")
        o("s_nop 7\ns_branch L_ostage")
        return o

    def final(self):
        e = Seg("final")
        e("L_final:")
        self.stamp(e, 7)
        e(f"s_mul_i32 s{S_T}, s{S_B}, 143360\ns_mul_i32 s{S_T2}, s{S_J}, 160\ns_add_u32 s{S_T}, s{S_T}, s{S_T2}")
        e(f"s_add_u32 s72, s{P_OUT}, s{S_T}\ns_addc_u32 s73, s{P_OUT+1}, 0\ns_sub_u32 s74, 143360, s{S_T2}\ns_mov_b32 s75, 0x20000")
        e(f"s_mul_i32 s{S_T}, s{S_WAVE}, 35840")
        e(f"v_add_u32 v12, s{S_T}, v{V_OST}")
        e("s_barrier")
        for i in range(35):
            e(f"ds_write_b128 v12, {ar(i*4)} offset:{i*1024}")
        e(f"v_and_b32 v13, 15, v{V_LANE}")
        e(f"v_lshrrev_b32 v14, 4, v{V_LANE}")
        e("v_mul_u32_u24 v13, 1280, v13")
        e("v_lshl_add_u32 v13, v14, 3, v13")
        e(f"s_lshl_b32 s{S_T}, s{S_WAVE}, 10")
        e(f"v_add_u32 v2, s{S_T}, v{V_OST}")
        e("v_add_u32 v3, 35840, v2\nv_add_u32 v4, 71680, v2\nv_add_u32 v5, 107520, v2")
        e("s_waitcnt lgkmcnt(0)")
        e("s_barrier")

        def reads(k):
            for pw in range(4):
                e(f"ds_read_b128 {vr(16 + k*16 + pw*4)}, v{2+pw} offset:{k*4096}")
        for k in range(3):
            reads(k)
        for k in range(9):
            b = 16 + k * 16
            if k + 3 < 9:
                reads(k + 3)
            e(f"s_add_u32 s{S_T}, s{S_WAVE}, {4*k}")
            e(f"s_mul_i32 s{S_T2}, s{S_T}, 37\ns_lshr_b32 s{S_T2}, s{S_T2}, 8")
            e(f"s_mul_i32 s{S_T3}, s{S_T2}, 7\ns_sub_u32 s{S_T3}, s{S_T}, s{S_T3}")
            e(f"s_mul_i32 s{S_T3}, s{S_T3}, 20480\ns_lshl_b32 s{S_T2}, s{S_T2}, 5\ns_add_u32 s{S_T3}, s{S_T3}, s{S_T2}")
            if k == 8:
                e(f"s_cmp_eq_u32 s{S_WAVE}, 3\ns_cbranch_scc1 L_fin")
            e(f"s_waitcnt lgkmcnt({4*min(3, 8-k)})")
            for r in range(4):
                e(f"v_add_f32 v{b+r}, v{b+r}, v{b+4+r}")
                e(f"v_add_f32 v{b+8+r}, v{b+8+r}, v{b+12+r}")
            for r in range(4):
                e(f"v_add_f32 v{b+r}, v{b+r}, v{b+8+r}")
            e(f"v_cvt_pk_bf16_f32 v{b+4}, v{b}, v{b+1}")
            e(f"v_cvt_pk_bf16_f32 v{b+5}, v{b+2}, v{b+3}")
            e(f"buffer_store_dwordx2 {vr(b+4, 2)}, v13, {SRD_OUT}, s{S_T3} offen")
        e("L_fin:")
        if self.o.stamps:
            e("s_waitcnt vmcnt(0) lgkmcnt(0)")
            self.stamp(e, 8)
            e(f"s_lshl_b32 s{S_T}, s2, 2\ns_add_u32 s{S_T}, s{S_T}, s{S_WAVE}\ns_lshl_b32 s{S_T}, s{S_T}, 7\ns_add_u32 s{S_T}, s{S_T}, {WS_ST}")
            self.srd(e, 76, P_WS, f"s{S_T}", 0, 128)
            e(f"v_lshlrev_b32 v2, 2, v{V_LANE}")
            e(f"buffer_store_dword v{V_STAMP}, v2, {SRD_AUX}, 0 offen")
        e("L_end:\ns_endpgm")
        return e

    def build(self):
        pro = self.prologue()
        q = self.qphase()
        conv = self.convert()
        late = self.late_setup()
        a0 = Seg("A0")
        a0("L_block0:")
        self.stamp(a0, 3)
        self.put(a0, self.k_reads(S_R[0]))
        self.phaseA(a0, "first", True, 0)
        b0 = Seg("B0")
        self.phaseB(b0, True, 0)
        lab = self.label("e")
        b0(f"s_cmp_eq_u32 s{S_ROLE}, 1\ns_cbranch_scc1 {lab}")
        b0(f"s_add_u32 s{S_R[3]}, s{S_R[2]}, {SLOT}\ns_add_u32 s{S_R[4]}, s{S_R[2]}, {2*SLOT}")
        b0("s_barrier")
        b0(f"{lab}:")
        b0(f"s_mov_b32 s{S_CNT}, 1")
        la = Seg("LA")
        la("L_loop:")
        lab = self.label("g")
        la(f"s_cmp_lg_u32 s{S_CNT}, s{S_G}\ns_cbranch_scc1 {lab}\ns_barrier\n{lab}:")
        self.phaseA(la, "fast", True, 1)
        lb = Seg("LB")
        lb("L_phaseB:")
        self.phaseB(lb, False, 1)
        lb(f"s_add_u32 s{S_CNT}, s{S_CNT}, 1\ns_cmp_lt_u32 s{S_CNT}, 16\ns_cbranch_scc1 L_loop")
        epi = self.epilogue()
        ost = self.ostage()
        fin = self.final()
        slow = Seg("slow")
        slow("L_slow:\ns_nop 7")
        self.phaseA(slow, "slow", False, 0)
        slow("s_nop 1\ns_branch L_phaseB")
        n = fix_path([pro, q, conv, a0, b0, la, lb, epi, ost, fin], verbose=self.o.verbose)
        n += fix_path([slow], verbose=self.o.verbose)
        n += fix_path([conv, late, a0], verbose=self.o.verbose)
        for path in ([lb, la, lb, la], [la, slow, lb], [b0, la], [lb, epi], [ost, ost, fin], [conv, late, a0]):
            fix_path(path, insert=False)
        print(f"inserted {n} wait states", file=sys.stderr)
        return [pro, q, conv, a0, b0, la, lb, epi, ost, fin, late, slow]


HEADER = """; Kernarg layout for this problem (64 bytes, ptrs only, base s[0:1]):
"""


def main():
    ap = argparse.ArgumentParser()
    ap.add_argument("-o", default="standalone__gqa_block_cached__near_ridge.s")
    ap.add_argument("--kvflags", default="nt")
    ap.add_argument("--thresh", type=float, default=16384.0)
    ap.add_argument("--stamps", type=int, default=0)
    ap.add_argument("--verbose", action="store_true")
    ap.add_argument("--nraw", type=int, default=4)
    ap.add_argument("--rotb", type=int, default=5)
    ap.add_argument("--go", type=int, default=10)
    ap.add_argument("--osflags", default="sc1")
    ap.add_argument("--acq", type=int, default=0)
    ap.add_argument("--nokv", type=int, default=0)
    ap.add_argument("--ra", type=int, default=7)
    ap.add_argument("--rb", type=int, default=1)
    ap.add_argument("--rs", type=int, default=4)
    ap.add_argument("--pflo", type=int, default=0)
    ap.add_argument("--pfhi", type=int, default=16)
    ap.add_argument("--spin", type=int, default=200000)
    o = ap.parse_args()
    segs = Gen(o).build()
    out = [HEADER.rstrip("\n")]
    out.append("; @launch grid=(256,1,1) block=(256,1,1) lds=163840")
    out.append('.amdgcn_target "amdgcn-amd-amdhsa--gfx950"\n.text')
    out.append(f".globl {KN}\n.p2align 8\n.type {KN},@function\n{KN}:")
    for s in segs:
        out.append(f"; ---- {s.name}")
        out.append(s.text())
    out.append('.section .rodata,"a"\n.p2align 6')
    out.append(f""".amdhsa_kernel {KN}
  .amdhsa_next_free_vgpr 512
  .amdhsa_next_free_sgpr 102
  .amdhsa_accum_offset 256
  .amdhsa_group_segment_fixed_size 0
  .amdhsa_kernarg_size 64
  .amdhsa_user_sgpr_count 2
  .amdhsa_user_sgpr_kernarg_segment_ptr 1
  .amdhsa_system_sgpr_workgroup_id_x 1
.end_amdhsa_kernel
""")
    open(o.o, "w").write("\n".join(out))


main()
```

```python
import sys, re, struct, argparse
from asmlib import Seg, fix_path, VmQueue

KN = "standalone__gqa_block_cached__near_ridge_kernel"
MFMA = "v_mfma_f32_16x16x32_bf16"


def f32bits(x):
    return struct.unpack("<I", struct.pack("<f", x))[0]


CSCALE = 1.4426950408889634 * (128 ** -0.5)

S_WAVE = 3
SRD_X, SRD_WQ, SRD_K, SRD_V, SRD_O = "s[4:7]", "s[8:11]", "s[12:15]", "s[16:19]", "s[20:23]"
S_M = [24, 25, 26, 27, 28, 29, 30, 31]
S_T = 32
S_C = 33
S_SEL0, S_SEL1 = 34, 35
S_WQOFF = 36
S_XOFF = 37
S_XLDS = 38
S_T2, S_T3 = 39, 40
S_CNT = 41
S_KOFF, S_KOFF2, S_VOFF, S_VOFF2 = 42, 43, 44, 45
S_OOFF, S_WOFF, S_SPIN, S_CALL = 46, 47, 48, 49
S_RET = 50
S_ROLE = 51
S_G = 34
S_P = 35
S_HB = 36
S_Q = 37
S_WOFF2 = 38
S_DW = [52, 53, 54, 55]
S_DX = [56, 57, 58, 59]
S_WQT, S_XT = 60, 61
S_OFF = 62
S_WLDS = 63
SRD_WT = "s[64:67]"
SRD_FL = "s[68:71]"
SRD_OUT = "s[72:75]"
SRD_AUX = "s[76:79]"
P_X, P_K, P_V, P_WQ, P_WO, P_OUT, P_DBG, P_WS = 80, 82, 84, 86, 88, 90, 92, 94
S_B, S_J, S_H, S_PAIR = 96, 97, 98, 99

V_LANE = 0
V_X1 = 1
V_DMA = 2
V_KA = 6
V_VA = 10
V_U = 18
V_QF = 24
V_VF = 136
V_S = 168
V_P = 184
V_NM = 212
V_L = 240
V_RL = 228
A_KF = 224
V_STAMP = 255
V_RAW = 24
V_XF = 152
V_AF = 208
V_WQ8 = 216
V_XS = 224
V_XRD = 226
V_WT = 228
V_OST = 254
SLOT = 8192
XBUF = 16 * SLOT
NRAW = 4

WS_WT = 32 << 20
WS_FL = 48 << 20

WS_ST = 64 << 20


def vr(b, n=4):
    return f"v[{b}:{b+n-1}]"


def ar(b, n=4):
    return f"a[{b}:{b+n-1}]"


def acc(j, t):
    return (j * 7 + t) * 4


def spread(fillers, ops, lo, hi):
    n = hi - lo
    for k, op in enumerate(ops):
        idx = lo + (k * n) // len(ops)
        fillers.setdefault(idx, []).append(op)


class Gen:
    def __init__(self, opt):
        self.o = opt
        self.vq = VmQueue()
        self.kvflags = opt.kvflags
        self.nlabel = 0

    def label(self, base):
        self.nlabel += 1
        return f"L_{base}{self.nlabel}"

    def stamp(self, seg, i):
        if self.o.stamps:
            seg(f"s_mem{'' if self.o.stamps == 2 else 'real'}time s[100:101]")
            seg("s_waitcnt lgkmcnt(0)")
            seg(f"v_writelane_b32 v{V_STAMP}, s100, {2*i}")
            seg(f"v_writelane_b32 v{V_STAMP}, s101, {2*i+1}")

    def emit_list(self, lst):
        out = []
        for x in lst:
            if isinstance(x, tuple):
                if x[0] == "vm":
                    self.vq.issue(x[1])
                    out.append(x[2])
                elif x[0] == "wait":
                    out.append(f"s_waitcnt vmcnt({min(63, self.vq.wait_for(x[1]))})")
            else:
                out.append(x)
        return out

    def put(self, seg, lst):
        for s in self.emit_list(lst):
            seg(s)

    def interleave(self, seg, mfmas, fillers):
        self.put(seg, fillers.get(-1, []))
        for i, m in enumerate(mfmas):
            seg(m)
            self.put(seg, fillers.get(i, []))

    @staticmethod
    def srd(p, d, base, off_lo, off_hi, nrec):
        p(f"s_add_u32 s{d}, s{base}, {off_lo}\ns_addc_u32 s{d+1}, s{base+1}, {off_hi}")
        p(f"s_mov_b32 s{d+2}, {nrec}\ns_mov_b32 s{d+3}, 0x20000")

    def prologue(self):
        p = Seg("prologue")
        p("s_cmp_ge_u32 s2, 256\ns_cbranch_scc1 L_end")
        p(f"s_load_dwordx16 s[{P_X}:{P_X+15}], s[0:1], 0")
        n, g, t0, t1 = V_U, V_U + 1, V_U + 2, V_U + 3
        p(f"v_lshrrev_b32 v{t0}, 6, v0")
        p(f"v_and_b32 v{V_LANE}, 63, v0")
        p(f"v_readfirstlane_b32 s{S_WAVE}, v{t0}")
        if self.o.stamps:
            p(f"v_mov_b32 v{V_STAMP}, 0")
        p(f"s_and_b32 s{S_B}, s2, 7\ns_lshl_b32 s{S_B}, s{S_B}, 2\ns_lshr_b32 s{S_T}, s2, 6\ns_add_u32 s{S_B}, s{S_B}, s{S_T}")
        p(f"s_lshr_b32 s{S_J}, s2, 3\ns_and_b32 s{S_J}, s{S_J}, 7")
        p(f"s_lshl_b32 s{S_H}, s{S_J}, 2\ns_add_u32 s{S_H}, s{S_H}, s{S_WAVE}")
        p(f"s_lshl_b32 s{S_PAIR}, s{S_B}, 5\ns_add_u32 s{S_PAIR}, s{S_PAIR}, s{S_H}")
        p(f"v_and_b32 v{n}, 15, v{V_LANE}")
        p(f"v_lshrrev_b32 v{g}, 4, v{V_LANE}")
        p(f"v_lshlrev_b32 v{t0}, 16, v{g}")
        p(f"v_lshl_add_u32 v{V_WQ8}, v{n}, 4, v{t0}")
        for i in range(1, 8):
            p(f"v_add_u32 v{V_WQ8+i}, {i*8192}, v{V_WQ8}")
        p(f"v_lshrrev_b32 v{t0}, 4, v{V_LANE}")
        p(f"v_and_b32 v{t1}, 7, v{V_LANE}")
        p(f"v_xor_b32 v{t0}, v{t0}, v{t1}")
        p(f"v_lshlrev_b32 v{t0}, 4, v{t0}")
        p(f"v_lshrrev_b32 v{t1}, 3, v{V_LANE}")
        p(f"s_lshl_b32 s{S_T}, s{S_WAVE}, 5")
        p(f"v_add_u32 v{t1}, s{S_T}, v{t1}")
        p(f"v_mul_u32_u24 v{t1}, 1280, v{t1}")
        p(f"v_add_u32 v{V_XS}, v{t0}, v{t1}")
        p(f"v_xor_b32 v{V_XS+1}, 64, v{V_XS}")
        p(f"v_add_u32 v{V_XS+1}, 10240, v{V_XS+1}")
        p(f"s_lshl_b32 s{S_XLDS}, s{S_WAVE}, 12\ns_add_u32 s{S_XLDS}, s{S_XLDS}, {XBUF}")
        p(f"s_and_b32 s{S_T}, s2, 7\ns_mul_i32 s{S_T}, s{S_T}, {self.o.rotb}")
        p(f"s_mul_i32 s{S_T3}, s{S_T}, 13108\ns_lshr_b32 s{S_T3}, s{S_T3}, 16\ns_mul_i32 s{S_T3}, s{S_T3}, 5\ns_sub_u32 s{S_T}, s{S_T}, s{S_T3}")
        p(f"s_lshl_b32 s{S_WQOFF}, s{S_T}, 20\ns_lshl_b32 s{S_XOFF}, s{S_T}, 8")
        p(f"s_lshr_b32 s{S_T}, s2, 6\ns_mul_i32 s{S_T}, s{S_T}, {self.o.wi}\ns_mul_i32 s{S_T3}, s{S_J}, {self.o.wj}\ns_add_u32 s{S_T}, s{S_T}, s{S_T3}")
        p(f"s_and_b32 s{S_OFF}, s{S_T}, 3")
        for c in range(4):
            p(f"s_xor_b32 s{S_T3}, s{S_OFF}, {c}\ns_lshl_b32 s{S_DW[c]}, s{S_T3}, 18")
        p(f"s_lshr_b32 s{S_T3}, s{S_OFF}, 1\ns_lshl_b32 s{S_DX[0]}, s{S_T3}, 7\ns_xor_b32 s{S_DX[1]}, s{S_DX[0]}, 128")
        p(f"s_mul_i32 s{S_T3}, s{S_B}, 143360")
        p(f"s_lshl_b32 s{S_T}, s{S_H}, 8")
        p("s_waitcnt lgkmcnt(0)")
        self.srd(p, 4, P_X, f"s{S_T3}", 0, 143360)
        p(f"s_add_u32 s8, s{P_WQ}, s{S_T}\ns_addc_u32 s9, s{P_WQ+1}, 0\ns_sub_u32 s10, 5242880, s{S_T}\ns_mov_b32 s11, 0x20000")
        if "x" in self.o.qab:
            p("s_mov_b32 s6, 0")
        if "w" in self.o.qab:
            p("s_mov_b32 s10, 0")
        lst = [f"s_add_u32 s{S_WQT}, s{S_WQOFF}, s{S_DW[0]}"]
        lst += self.x_dma(0)
        lst += self.wq_loads(0)
        lst += self.x_dma(1)
        for s in range(1, NRAW - 1):
            lst += self.wq_loads(s)
        self.put(p, lst)
        self.stamp(p, 0)
        p(f"s_lshl_b32 s{S_T}, s{S_PAIR}, 17\ns_lshr_b32 s{S_T3}, s{S_PAIR}, 15")
        nr = 0 if self.o.nokv else 131072
        self.srd(p, 12, P_K, f"s{S_T}", f"s{S_T3}", nr)
        self.srd(p, 16, P_V, f"s{S_T}", f"s{S_T3}", nr)
        self.srd(p, 68, P_WS, WS_FL, 0, 8192)
        p(f"s_lshl_b32 s{S_T}, s{S_B}, 8\ns_lshl_b32 s{S_T3}, s{S_WAVE}, 6\ns_add_u32 s{S_T}, s{S_T}, s{S_T3}\ns_lshl_b32 s{S_T3}, s{S_J}, 2\ns_add_u32 s{S_T}, s{S_T}, s{S_T3}")
        p(f"v_mov_b32 v{t0}, 0\nv_mov_b32 v{t1}, s{S_T}")
        self.put(p, [("vm", "zf", f"buffer_store_dword v{t0}, v{t1}, {SRD_FL}, 0 offen sc1")])
        self.put(p, [("vm", "zf", f"buffer_store_dword v{t0}, v{t1}, {SRD_FL}, 0 offen offset:32 sc1")])
        p(f"s_lshl_b32 s{S_M[0]}, s{S_WAVE}, 15")
        for r in range(1, 8):
            p(f"s_add_u32 s{S_M[r]}, s{S_M[0]}, {r*4096}")
        p(f"s_lshl_b32 s{S_T}, s2, 2\ns_add_u32 s{S_T}, s{S_T}, s{S_WAVE}")
        p(f"s_lshr_b32 s{S_T2}, s{S_T}, 3\ns_and_b32 s{S_T3}, s{S_T}, 7")
        p(f"s_mul_i32 s{S_T}, s{S_T2}, 40960\ns_mul_i32 s{S_CNT}, s{S_T3}, 160\ns_add_u32 s{S_T}, s{S_T}, s{S_CNT}")
        p(f"s_add_u32 s76, s{P_WO}, s{S_T}\ns_addc_u32 s77, s{P_WO+1}, 0\ns_sub_u32 s78, 40960, s{S_CNT}\ns_mov_b32 s79, 0x20000")
        p(f"s_lshl_b32 s{S_T}, s{S_T3}, 7\ns_add_u32 s{S_T}, s{S_T}, s{S_T2}\ns_mul_i32 s{S_T}, s{S_T}, 5120\ns_add_u32 s{S_T}, s{S_T}, {WS_WT}")
        self.srd(p, 64, P_WS, f"s{S_T}", 0, 5120)
        if "o" in self.o.qab:
            p("s_mov_b32 s78, 0\ns_mov_b32 s66, 0")
        p(f"s_movk_i32 s{S_T}, 6554")
        for i in range(5):
            p(f"v_add_u32 v{t0}, {64*i}, v{V_LANE}")
            p(f"v_mul_lo_u32 v{t1}, v{t0}, s{S_T}")
            p(f"v_lshrrev_b32 v{t1}, 16, v{t1}")
            p(f"v_mul_u32_u24 v{t1}, 1120, v{t1}")
            p(f"v_lshl_add_u32 v{V_WT+i}, v{t0}, 4, v{t1}")
        p(f"v_lshrrev_b32 v{t0}, 2, v{V_LANE}")
        p(f"v_mul_u32_u24 v{t0}, 160, v{t0}")
        p(f"v_and_b32 v{t1}, 3, v{V_LANE}")
        p(f"v_lshl_add_u32 v{t0}, v{t1}, 3, v{t0}")
        p(f"s_lshl_b32 s{S_WLDS}, s{S_WAVE}, 13\ns_add_u32 s{S_WLDS}, s{S_WLDS}, {XBUF}")
        p(f"v_add_u32 v{V_X1}, s{S_WLDS}, v{t0}")
        p(f"v_lshrrev_b32 v{t0}, 1, v{n}")
        p(f"v_xor_b32 v{t0}, v{t0}, v{g}")
        p(f"v_lshlrev_b32 v{t0}, 4, v{t0}")
        p(f"v_lshl_add_u32 v{t0}, v{n}, 7, v{t0}")
        p(f"v_add_u32 v{t0}, {XBUF}, v{t0}")
        p(f"s_and_b32 s{S_T}, s{S_OFF}, 1\ns_lshl_b32 s{S_T}, s{S_T}, 6")
        p(f"v_xor_b32 v{V_XRD}, s{S_T}, v{t0}")
        p(f"v_xor_b32 v{V_XRD+1}, 64, v{V_XRD}")
        for i in range(4):
            p(f"v_add_u32 v{t0}, {4*i}, v{g}")
            p(f"v_and_b32 v{t1}, 7, v{t0}")
            p(f"v_lshlrev_b32 v{t1}, 1, v{t1}")
            p(f"v_lshrrev_b32 v{t0}, 3, v{t0}")
            p(f"v_or_b32 v{t0}, v{t0}, v{t1}")
            p(f"v_xor_b32 v{t0}, v{t0}, v{n}")
            p(f"v_lshlrev_b32 v{t0}, 4, v{t0}")
            p(f"v_lshl_add_u32 v{V_DMA+i}, v{g}, 8, v{t0}")
        p(f"v_and_b32 v{t1}, 7, v{n}")
        p(f"v_lshlrev_b32 v{t1}, 1, v{t1}")
        p(f"v_lshrrev_b32 v{t0}, 3, v{n}")
        p(f"v_or_b32 v{t0}, v{t0}, v{t1}")
        p(f"v_lshlrev_b32 v{t1}, 2, v{g}")
        p(f"v_xor_b32 v{t0}, v{t0}, v{t1}")
        p(f"v_lshlrev_b32 v{t0}, 4, v{t0}")
        p(f"v_lshl_add_u32 v{t0}, v{n}, 8, v{t0}")
        p(f"v_add_u32 v{V_KA}, s{S_M[0]}, v{t0}")
        for kk in range(1, 4):
            p(f"v_xor_b32 v{V_KA+kk}, {kk << 4}, v{V_KA}")
        m_, c_ = n, g
        p(f"v_lshrrev_b32 v{m_}, 2, v{V_LANE}")
        p(f"v_and_b32 v{c_}, 3, v{V_LANE}")
        p(f"v_and_b32 v{t1}, 7, v{m_}")
        p(f"v_lshlrev_b32 v{t1}, 1, v{t1}")
        p(f"v_lshrrev_b32 v{t0}, 3, v{m_}")
        p(f"v_or_b32 v{t0}, v{t0}, v{t1}")
        p(f"v_lshrrev_b32 v{t1}, 1, v{c_}")
        p(f"v_xor_b32 v{t0}, v{t0}, v{t1}")
        p(f"v_lshlrev_b32 v{t0}, 4, v{t0}")
        p(f"v_lshl_add_u32 v{t0}, v{m_}, 8, v{t0}")
        p(f"v_and_b32 v{t1}, 1, v{c_}")
        p(f"v_lshl_add_u32 v{t0}, v{t1}, 3, v{t0}")
        p(f"v_add_u32 v{V_VA}, s{S_M[0]}, v{t0}")
        for d in range(1, 8):
            p(f"v_xor_b32 v{V_VA+d}, {d << 5}, v{V_VA}")
        p(f"v_lshlrev_b32 v{V_OST}, 4, v{V_LANE}")
        p(f"s_mov_b32 s{S_C}, {f32bits(CSCALE):#x}")
        p(f"s_mov_b32 s{S_SEL0}, 0x05040100\ns_mov_b32 s{S_SEL1}, 0x07060302")
        p(f"s_mov_b32 s{S_KOFF}, 0\ns_movk_i32 s{S_KOFF2}, 4096\ns_movk_i32 s{S_VOFF}, 8192\ns_movk_i32 s{S_VOFF2}, 12288")
        self.put(p, [("wait", "x0")])
        p("s_barrier")
        for t in range(7):
            p(f"ds_read_b128 {vr(V_XF + t*4)}, v{V_XRD} offset:{t*2048}")
        self.put(p, [("wait", "wq0")])
        for s in self.perms(0, 0):
            p(s)
        self.stamp(p, 1)
        return p

    def x_dma(self, m):
        out = [f"s_add_u32 s{S_XT}, s{S_XOFF}, s{S_DX[m % 2]}"]
        for i in range(4):
            out.append(f"s_add_u32 m0, s{S_XLDS}, {(m % 2)*16384 + i*1024}")
            if i == 2:
                out.append(f"s_add_u32 s{S_XT}, s{S_XT}, 20480")
            out.append(("vm", f"x{m}", f"buffer_load_dwordx4 v{V_XS + (i & 1)}, {SRD_X}, s{S_XT} offen lds"))
        if m % 2 == 1:
            out += [f"s_add_u32 s{S_XOFF}, s{S_XOFF}, 256", f"s_cmp_ge_u32 s{S_XOFF}, 1280", f"s_cselect_b32 s{S_XOFF}, 0, s{S_XOFF}"]
        return out

    def wq_loads(self, s):
        base = V_RAW + (s % NRAW) * 32
        out = []
        for i in range(8):
            out.append(("vm", f"wq{s}", f"buffer_load_dwordx4 {vr(base + i*4)}, v{V_WQ8+i}, {SRD_WQ}, s{S_WQT} offen"))
        if s % 4 == 3:
            out += [f"s_add_u32 s{S_WQOFF}, s{S_WQOFF}, {8192*128}",
                    f"s_cmp_ge_u32 s{S_WQOFF}, 5242880", f"s_cselect_b32 s{S_WQOFF}, 0, s{S_WQOFF}"]
        out.append(f"s_add_u32 s{S_WQT}, s{S_WQOFF}, s{S_DW[(s + 1) % 4]}")
        return out

    def perms(self, s, j):
        base = V_RAW + (s % NRAW) * 32
        d = V_AF + (j & 1) * 4
        sel = S_SEL1 if (j & 1) else S_SEL0
        return [f"v_perm_b32 v{d+r}, v{base + (2*r+1)*4 + (j >> 1)}, v{base + (2*r)*4 + (j >> 1)}, s{sel}" for r in range(4)]

    def pf_dma(self, k):
        q, i = k // 8, k % 8
        srd = SRD_K if q % 2 == 0 else SRD_V
        so = [S_KOFF, S_KOFF2, S_VOFF, S_VOFF2][(q // 2) * 2 + i // 4]
        tag = ("K" if q % 2 == 0 else "V") + str(q // 2)
        return [f"s_mov_b32 m0, s{S_M[q*2 + i // 4]}",
                ("vm", tag, f"buffer_load_dwordx4 v{V_DMA + i % 4}, {srd}, s{so} offen offset:{(i % 4)*1024} {self.kvflags} lds")]

    def qstep(self, seg, s, pf):
        NS = 20
        xf = V_XF + (s & 1) * 28
        xn = V_XF + ((s + 1) & 1) * 28
        mf = []
        for j in range(8):
            for t in range(7):
                c = "0" if s == 0 else ar(acc(j, t))
                mf.append(f"{MFMA} {ar(acc(j,t))}, {vr(V_AF+(j&1)*4)}, {vr(xf+t*4)}, {c}")
        fl = {-1: ["s_waitcnt lgkmcnt(0)"]}
        for j in range(8):
            if j < 7:
                ops = self.perms(s, j + 1)
            elif s + 1 < NS:
                ops = [("wait", f"wq{s+1}")] + self.perms(s + 1, 0)
            else:
                ops = []
            if ops:
                spread(fl, ops, j * 7, j * 7 + 4 + (1 if j == 7 else 0))
        groups = []
        if s + NRAW - 1 < NS:
            w = self.wq_loads(s + NRAW - 1)
            groups += [[x] for x in w[:7]] + [w[7:]]
        after = []
        BAR = 20
        bar = (s % 2 == 1)
        nx = 0
        if bar and (s + 3) // 2 < 10:
            x = self.x_dma((s + 3) // 2)
            after += [x[0:3], x[3:5], x[5:8], x[8:]]
            nx = 4
        for k in pf:
            after.append(self.pf_dma(k))
        if s == NS - 1:
            for i in range(5):
                after.append([f"s_add_u32 m0, s{S_WLDS}, {i*1024}",
                              ("vm", "wo", f"buffer_load_dwordx4 v{V_WT+i}, {SRD_AUX}, 0 offen lds")])
        pre_n = min(len(groups), 4)
        for gq, pos in zip(groups[:pre_n], [2, 6, 11, 16]):
            for k, op in enumerate(gq):
                fl.setdefault(pos + k, []).append(op)
        if bar:
            mid = [("wait", f"x{(s+1)//2}"), "s_barrier"] if s + 1 < NS else ["s_barrier"]
            fl.setdefault(BAR, []).extend(mid)
        if s + 1 < NS:
            for t in range(7):
                fl.setdefault(BAR + 1 + t + (t + 3) // 4, []).append(
                    f"ds_read_b128 {vr(xn + t*4)}, v{V_XRD + ((s+1) & 1)} offset:{(((s+1)//2) % 2)*16384 + t*2048}")
        rest = after[:nx] + groups[pre_n:] + after[nx:]
        if rest:
            lo, hi = BAR + 5, 53
            last = 0
            for k, gq in enumerate(rest):
                pos = lo + (k * (hi - lo)) // len(rest)
                for kk, op in enumerate(gq):
                    last = max(last, min(55, pos + (kk + 1) // 2))
                    fl.setdefault(last, []).append(op)
        self.interleave(seg, mf, fl)

    def qphase(self):
        q = Seg("qphase")
        lo, hi = self.o.pflo, self.o.pfhi
        sched = {s: [] for s in range(20)}
        for k in range(32):
            sched[lo + (k * (hi - lo)) // 32].append(k)
        for s in range(20):
            self.qstep(q, s, sched[s])
        return q

    def convert(self):
        c = Seg("convert")
        self.stamp(c, 2)
        self.put(c, [("wait", "K0")] + self.k_reads(0))
        c(f"s_movk_i32 s{S_KOFF}, 16384\ns_movk_i32 s{S_KOFF2}, 20480\ns_movk_i32 s{S_VOFF}, 16384\ns_movk_i32 s{S_VOFF2}, 20480")
        c(f"v_mov_b32 v{V_U}, s{S_C}\nv_mov_b32 v{V_U+1}, s{S_C}")
        k = 0
        for t in range(7):
            for kk in range(4):
                for rho in range(4):
                    t0 = V_S + (k % 4) * 2
                    k += 1
                    c(f"v_accvgpr_read_b32 v{t0}, a{acc(2*rho, t) + kk}")
                    c(f"v_accvgpr_read_b32 v{t0+1}, a{acc(2*rho+1, t) + kk}")
                    c(f"v_pk_mul_f32 {vr(t0, 2)}, {vr(t0, 2)}, {vr(V_U, 2)}")
                    c(f"v_cvt_pk_bf16_f32 v{V_QF + (t*4+kk)*4 + rho}, v{t0}, v{t0+1}")
            if t == 0:
                c("s_waitcnt lgkmcnt(0)")
                self.put(c, self.tile_dma("K", 2))
        return c

    def wo_piece(self, s0):
        self.put(s0, [("wait", "wo")])
        for tau in range(5):
            for e in range(2):
                s0(f"ds_read_b64_tr_b16 {ar(acc(tau, 6) + e*2, 2)}, v{V_X1} offset:{e*2560 + tau*32}")
        s0(f"v_add_u32 v{V_X1}, 4096, v{V_OST}")
        s0("s_waitcnt lgkmcnt(0)")
        for tau in range(5):
            va, of = (V_OST, tau * 1024) if tau < 4 else (V_X1, 0)
            self.put(s0, [("vm", "wst", f"buffer_store_dwordx4 {ar(acc(tau, 6))}, v{va}, {SRD_WT}, 0 offen offset:{of} sc1")])

    def poll(self, seg, name, load, cmp, sleep):
        seg(f"s_mov_b32 s{S_SPIN}, 0")
        seg(f"L_{name}:")
        seg(load)
        seg("s_waitcnt vmcnt(0)")
        for c in cmp:
            seg(c)
        seg(f"s_cbranch_vccz L_{name}_done")
        seg(f"s_sleep {sleep}\ns_add_u32 s{S_SPIN}, s{S_SPIN}, 1\ns_cmp_lt_u32 s{S_SPIN}, {self.o.spin}\ns_cbranch_scc1 L_{name}")
        seg(f"L_{name}_done:")

    def tile_dma(self, which, blk):
        srd = SRD_K if which == "K" else SRD_V
        o1, o2 = (S_KOFF, S_KOFF2) if which == "K" else (S_VOFF, S_VOFF2)
        mi = (blk & 1) * 4 + (0 if which == "K" else 2)
        out = []
        for h, o in enumerate((o1, o2)):
            out.append(f"s_mov_b32 m0, s{S_M[mi + h]}")
            for i in range(4):
                out.append(("vm", f"{which}{blk}",
                            f"buffer_load_dwordx4 v{V_DMA+i}, {srd}, s{o} offen offset:{i*1024} {self.kvflags} lds"))
            out.append(f"s_add_u32 s{o}, s{o}, 8192")
        return out

    def k_read(self, blk, a, kk):
        return f"ds_read_b128 {ar(A_KF + (a*4+kk)*4)}, v{V_KA+kk} offset:{(blk & 1)*16384 + a*4096}"

    def k_reads(self, blk):
        return [self.k_read(blk, a, kk) for a in range(2) for kk in range(4)]

    def v_read(self, blk, d):
        return [f"ds_read_b64_tr_b16 {vr(V_VF + d*4 + a*2, 2)}, v{V_VA+d} offset:{(blk & 1)*16384 + 8192 + a*4096}" for a in range(2)]

    def softmax_ops(self, t, mode, par):
        S = V_S + (t & 1) * 8
        nm = V_NM + 4 * t
        Ln = V_L + par * 7 + t
        Lo = V_L + (par ^ 1) * 7 + t
        u = V_U
        ops = []
        if mode != "fast":
            ops += [f"v_max3_f32 v{u}, v{S}, v{S+1}, v{S+2}",
                    f"v_max3_f32 v{u}, v{u}, v{S+3}, v{S+4}",
                    f"v_max3_f32 v{u}, v{u}, v{S+5}, v{S+6}",
                    f"v_max_f32 v{u}, v{u}, v{S+7}",
                    f"v_mov_b32 v{u+1}, v{u}",
                    f"v_permlane16_swap_b32 v{u}, v{u+1}",
                    f"v_max_f32 v{u}, v{u}, v{u+1}",
                    f"v_mov_b32 v{u+1}, v{u}",
                    f"v_permlane32_swap_b32 v{u}, v{u+1}",
                    f"v_max_f32 v{u}, v{u}, v{u+1}"]
            if mode == "first":
                ops += [f"v_sub_f32 v{nm+i}, 0, v{u}" for i in range(4)]
                ops += [f"v_mov_b32 v{Lo}, 0"]
            else:
                ops += [f"v_sub_f32 v{u}, 0, v{u}",
                        f"v_min_f32 v{u}, v{u}, v{nm}",
                        f"v_sub_f32 v{u+1}, v{u}, v{nm}",
                        f"v_exp_f32 v{u+1}, v{u+1}"]
                ops += [f"v_mov_b32 v{nm+i}, v{u}" for i in range(4)]
                ops += [f"v_mul_f32 v{Lo}, v{Lo}, v{u+1}"]
                for d in range(8):
                    for r in range(4):
                        a = acc(d, t) + r
                        tt = u + 2 + (r & 1)
                        ops += [f"v_accvgpr_read_b32 v{tt}, a{a}",
                                f"v_mul_f32 v{tt}, v{tt}, v{u+1}",
                                f"v_accvgpr_write_b32 a{a}, v{tt}"]
            ops += [f"v_add_f32 v{S+i}, v{S+i}, v{nm}" for i in range(8)]
        ex = [f"v_exp_f32 v{S+i}, v{S+i}" for i in range(8)]
        cv = [f"v_cvt_pk_bf16_f32 v{V_P + t*4 + r}, v{S+2*r}, v{S+2*r+1}" for r in range(4)]
        a = [f"v_add_f32 v{u+2}, v{S}, v{S+1}",
             f"v_add_f32 v{u+3}, v{S+2}, v{S+3}",
             f"v_add_f32 v{u+4}, v{S+4}, v{S+5}",
             f"v_add_f32 v{Ln}, v{S+6}, v{S+7}",
             f"v_add_f32 v{u+2}, v{u+2}, v{u+3}",
             f"v_add_f32 v{Ln}, v{Ln}, v{u+4}",
             f"v_add_f32 v{u+2}, v{u+2}, v{Lo}",
             f"v_add_f32 v{Ln}, v{Ln}, v{u+2}"]
        first = ops + [ex[0], ex[1], ex[2], a[0], ex[3], ex[4], a[1], ex[5], a[4], ex[6], a[2], ex[7], a[6]]
        second = [cv[0], a[3], cv[1], a[5], cv[2], a[7], cv[3]]
        return first, second

    def softmax_parts(self, t, par):
        S = V_S + (t & 1) * 8
        Ln = V_L + par * 7 + t
        Lo = V_L + (par ^ 1) * 7 + t
        u = V_U
        ex = [f"v_exp_f32 v{S+i}, v{S+i}" for i in range(8)]
        cv = [f"v_cvt_pk_bf16_f32 v{V_P + t*4 + r}, v{S+2*r}, v{S+2*r+1}" for r in range(4)]
        ad = [f"v_add_f32 v{u+2}, v{S}, v{S+1}",
              f"v_add_f32 v{u+3}, v{S+2}, v{S+3}",
              f"v_add_f32 v{u+4}, v{S+4}, v{S+5}",
              f"v_add_f32 v{Ln}, v{S+6}, v{S+7}",
              f"v_add_f32 v{u+2}, v{u+2}, v{u+3}",
              f"v_add_f32 v{Ln}, v{Ln}, v{u+4}",
              f"v_add_f32 v{u+2}, v{u+2}, v{Lo}",
              f"v_add_f32 v{Ln}, v{Ln}, v{u+2}"]
        return ex, ad, cv

    def qk_mfmas(self, t, mode, kreg=None):
        S = V_S + (t & 1) * 8
        out = []
        for a in range(2):
            for kk in range(4):
                if kk == 0:
                    c = vr(V_NM + 4 * t) if mode == "fast" else "0"
                else:
                    c = vr(S + a * 4)
                kf = ar(A_KF + (a * 4 + kk) * 4) if kreg is None else vr(kreg + (a * 4 + kk) * 4)
                out.append(f"{MFMA} {vr(S+a*4)}, {kf}, {vr(V_QF+(t*4+kk)*4)}, {c}")
        return out

    def pv_mfmas(self, t, zero):
        return [f"{MFMA} {ar(acc(d,t))}, {vr(V_VF+d*4)}, {vr(V_P+t*4)}, {'0' if zero else ar(acc(d,t))}" for d in range(8)]

    def superphase(self, seg, j, mode="fast", pv=True, pvzero=False, qk=True, exact=False, slow_label=None):
        par = j & 1
        mf = []
        fl = {}
        pos = {}
        for st in range(8):
            if pv and st >= 1:
                pos[("pv", st - 1)] = len(mf)
                mf += self.pv_mfmas(st - 1, pvzero)
            if qk and st <= 6:
                pos[("qk", st)] = len(mf)
                mf += self.qk_mfmas(st, mode)
        n = len(mf)
        if qk:
            fl[-1] = ["s_waitcnt lgkmcnt(15)" if pv else "s_waitcnt lgkmcnt(0)"]
        if pv:
            p0 = pos[("pv", 0)]
            fl.setdefault(p0 - 1, []).append("s_waitcnt lgkmcnt(8)")
            fl.setdefault(p0 + 3, []).append("s_waitcnt lgkmcnt(0)")
        if qk:
            for t in range(7):
                first, second = self.softmax_ops(t, mode, par)
                if pv:
                    s0 = pos[("pv", t)]
                    s1 = s0 + 16 if t < 6 else n
                else:
                    s0 = pos[("qk", t + 1)] if t < 6 else n - 1
                    s1 = s0 + 8 if t < 6 else n
                if pv and mode == "fast":
                    ex, ad, cv = self.softmax_parts(t, par)
                    if t < 6:
                        plan = {0: [ex[0]], 1: [ex[1]], 2: [ex[2]], 3: [ex[3]], 4: [ex[4]], 5: [ad[0], ad[1]], 6: [ex[5]],
                                8: [ex[6]], 9: [cv[0], ad[4]], 10: [ex[7]], 11: [cv[1], ad[2]], 12: [ad[6], cv[2]],
                                13: [ad[3], cv[3]], 14: [ad[5], ad[7]]}
                        for gp, ops in plan.items():
                            fl.setdefault(s0 + gp, []).extend(ops)
                    else:
                        plan = {0: [ex[0]], 1: [ex[1]], 2: [ex[2]], 3: [ex[3]], 4: [ex[4]], 5: [ex[5]], 6: [ex[6]]}
                        for gp, ops in plan.items():
                            fl.setdefault(s0 + gp, []).extend(ops)
                        tail_second = [ex[7], ad[0], ad[1], ad[2], ad[4], ad[3], ad[6], ad[5], ad[7]]
                        tail_cv = cv
                elif t < 6:
                    lo = s0 + (1 if pv else 0)
                    mid = s0 + (s1 - s0) * 11 // 16 if pv else s0 + (s1 - s0) * 5 // 8
                    spread(fl, first, lo, mid)
                    spread(fl, second, mid, s1)
                else:
                    fl.setdefault(n - 1, []).extend(first)
                    tail_second = second
                    tail_cv = []
        if qk and j >= 1:
            d = self.tile_dma("K", j + 2)
            fl.setdefault(-1, []).append(d[0])
            for gp, ops in enumerate([[d[1]], [d[2]], [d[3]], [d[4], d[6]], [d[5], d[7]], [d[8]], [d[9]], [d[10], d[11]]]):
                fl.setdefault(gp, []).extend(ops)
        if pv and qk:
            d = self.tile_dma("V", j + 1)
            seq = [[d[0]], [d[1]], [d[2]], [d[3]], [d[4], d[6]], [d[5], d[7]], [d[8]], [d[9]], [d[10], d[11]]]
            gaps = []
            for t in range(5):
                gaps += [pos[("pv", t)] + 7, pos[("pv", t)] + 15]
            for gp, ops in zip(gaps, seq):
                fl.setdefault(gp, []).extend(ops)
        if qk and j < 15:
            q6 = pos[("qk", 6)]
            w = ("wait", f"K{j+1}") if exact else "s_waitcnt vmcnt(24)"
            fl.setdefault(q6 - 1, []).append(w)
            for i in range(8):
                fl.setdefault(q6 + i, []).append(self.k_read(j + 1, i // 4, i % 4))
        tail = []
        if qk:
            tail += tail_second
            if mode == "fast":
                u = V_U + 5
                L = V_L + par * 7
                fl.setdefault(pos[("pv", 5)] + 7 if pv else n - 6, []).extend(
                    [f"v_max3_f32 v{u}, v{L}, v{L+1}, v{L+2}", f"v_max3_f32 v{u}, v{u}, v{L+3}, v{L+4}"])
                tail += [f"v_max3_f32 v{u}, v{u}, v{L+5}, v{L+6}",
                         f"v_cmp_lt_f32 vcc, {f32bits(self.o.thresh):#x}, v{u}"]
            tail += tail_cv
            tail.append(("wait", f"V{j}") if exact else "s_waitcnt vmcnt(16)")
            if mode == "fast":
                tail += [f"s_cbranch_vccnz {slow_label}", f"{slow_label}_ret:"]
            for d in range(8):
                tail += self.v_read(j, d)
        if not qk:
            ops = []
            u = V_U
            for t in range(7):
                l = V_L + 7 + t
                ops += [f"v_mov_b32 v{u}, v{l}", "s_nop 0", f"v_permlane16_swap_b32 v{l}, v{u}", f"v_add_f32 v{l}, v{l}, v{u}",
                        f"v_mov_b32 v{u}, v{l}", "s_nop 0", f"v_permlane32_swap_b32 v{l}, v{u}", f"v_add_f32 v{l}, v{l}, v{u}",
                        f"v_rcp_f32 v{V_RL + 2*t}, v{l}", f"v_rcp_f32 v{V_RL + 2*t + 1}, v{l}"]
            spread(fl, ops, 4, n)
        fl.setdefault(n - 1, []).extend(tail)
        self.interleave(seg, mf, fl)

    def slowpath(self):
        s = Seg("slow")
        def swap():
            for t in range(7):
                s(f"v_swap_b32 v{V_L+t}, v{V_L+7+t}")
        s("L_slowP:\ns_nop 1")
        s(f"s_mov_b32 s{S_RET}, 2\ns_movk_i32 s{S_T}, 8192\ns_branch L_slow_body")
        s("L_slowE:\ns_nop 1")
        swap()
        s(f"s_mov_b32 s{S_RET}, 0\ns_lshl_b32 s{S_T}, s{S_CNT}, 13\ns_branch L_slow_body")
        s("L_slowO:\ns_nop 1")
        s(f"s_mov_b32 s{S_RET}, 1\ns_lshl_b32 s{S_T}, s{S_CNT}, 13\ns_add_u32 s{S_T}, s{S_T}, 8192")
        s("L_slow_body:")
        s(f"v_and_b32 v{V_U}, 15, v{V_LANE}\nv_lshrrev_b32 v{V_U+1}, 4, v{V_LANE}")
        s(f"v_lshlrev_b32 v{V_U}, 8, v{V_U}\nv_lshl_add_u32 v{V_U}, v{V_U+1}, 6, v{V_U}")
        s(f"s_add_u32 s{S_T2}, s{S_T}, 4096\ns_nop 7")
        for a in range(2):
            for kk in range(4):
                s(f"buffer_load_dwordx4 {vr(V_VF + (a*4+kk)*4)}, v{V_U}, {SRD_K}, s{S_T if a == 0 else S_T2} offen offset:{kk*16}")
        s("s_waitcnt vmcnt(0)")
        mf = []
        fl = {}
        for t in range(7):
            mf += self.qk_mfmas(t, "slow", kreg=V_VF)
            first, second = self.softmax_ops(t, "slow", 1)
            if t < 6:
                spread(fl, first + second, (t + 1) * 8, (t + 2) * 8)
            else:
                fl.setdefault(55, []).extend(first + second)
        self.interleave(s, mf, fl)
        s("s_nop 3")
        s(f"s_cmp_eq_u32 s{S_RET}, 1\ns_cbranch_scc1 L_slowO_ret")
        s(f"s_cmp_eq_u32 s{S_RET}, 2\ns_cbranch_scc1 L_slowP_ret")
        swap()
        s("s_nop 1\ns_branch L_slowE_ret")
        return s

    def oacc(self, i):
        return ar(i * 4) if i < 64 else vr(228 + (i - 64) * 4)

    def tail(self):
        e = Seg("tail")
        self.vq.q = []
        u = V_U
        LF = V_L + 7
        PT = 17920
        pool = [vr(136 + 4 * i) for i in range(8)] + [vr(184 + 4 * i) for i in range(11)]
        late_pool = [vr(168 + 4 * i) for i in range(4)]
        loc = {}
        for uu in range(4):
            for t in range(7):
                loc[("B", "own", uu, t)] = vr(V_QF + (uu * 7 + t) * 4)
        seq = [(0, st) for st in range(4)] + [(1, st) for st in range(4)] + \
              [(0, st) for st in range(4, 16)] + [(1, st) for st in range(4, 16)]
        work = []
        for k in range(32):
            if k in (16, 28):
                for ia in range(5):
                    for kk in range(k, k + 4):
                        work += [(kk, ia, t) for t in range(7)]
            elif k in (17, 18, 19, 29, 30, 31):
                continue
            else:
                work += [(k, ia, t) for ia in range(5) for t in range(7)]

        def bkey(k, t):
            ps, st = seq[k]
            return ("B", "own", st, t) if st < 4 else ("B", ps, st, t)
        lastA, lastB, firstA, firstB = {}, {}, {}, {}
        for n, (k, ia, t) in enumerate(work):
            lastA[(k, ia)] = n
            lastB[bkey(k, t)] = n
            firstA.setdefault((k, ia), n)
            firstB.setdefault(bkey(k, t), n)
        todoA = sorted(firstA, key=firstA.get)
        todoB = [x for x in sorted(firstB, key=firstB.get) if x[1] != "own"]
        state = {"covered": -1, "bar": False, "ds": [], "head": None, "nA": 0}

        def a_load():
            if not todoA or not pool or len(self.vq.q) - 1 - state["covered"] >= self.o.maxq:
                return False
            k, i = todoA.pop(0)
            ps, st = seq[k]
            reg = pool.pop(0)
            loc[("A", k, i)] = reg
            state["nA"] += 1
            if state["head"] != (ps, st // 4):
                state["head"] = (ps, st // 4)
                e(f"s_add_u32 s{S_Q}, s{S_WAVE}, {st // 4}\ns_and_b32 s{S_Q}, s{S_Q}, 3\ns_mul_i32 s{S_DW[0]}, s{S_Q}, {4*5120}")
                if ps:
                    e(f"s_add_u32 s{S_DW[0]}, s{S_DW[0]}, {128*5120}")
                for c in range(1, 4):
                    e(f"s_add_u32 s{S_DW[c]}, s{S_DW[0]}, {c*5120}")
            va, of = (V_OST, i * 1024) if i < 4 else (V_X1, 0)
            self.put(e, [("vm", f"A{k}_{i}", f"buffer_load_dwordx4 {reg}, v{va}, {SRD_WT}, s{S_DW[st % 4]} offen offset:{of} sc1")])
            return True

        def b_load(limit):
            if not todoB or not pool or not state["bar"] or firstB[todoB[0]] > limit or len(state["ds"]) >= 14:
                return False
            key = todoB.pop(0)
            _, ps, st, t = key
            reg = pool.pop(0)
            loc[key] = reg
            e(f"ds_read_b128 {reg}, v{V_DMA + st // 4} offset:{((st % 4)*7 + t)*1024}")
            state["ds"].append(key)
            return True

        def need_vm(tag):
            pos = max(n for n, x in enumerate(self.vq.q) if x == tag)
            if pos > state["covered"]:
                e(f"s_waitcnt vmcnt({min(63, len(self.vq.q) - 1 - pos)})")
                state["covered"] = pos

        def need_b(key):
            if key in state["ds"]:
                n = state["ds"].index(key)
                e(f"s_waitcnt lgkmcnt({len(state['ds']) - 1 - n})")
                del state["ds"][:n + 1]

        self.stamp(e, 4)
        e("s_waitcnt vmcnt(0)")
        e(f"v_and_b32 v{u+2}, 0x01010101, v{u+2}\nv_cmp_ne_u32 vcc, 0x01010101, v{u+2}")
        e("s_cbranch_vccz L_pollw_done")
        self.poll(e, "pollw", f"buffer_load_dword v{u+2}, v{u+3}, {SRD_AUX}, 0 offen sc1",
                  [f"v_and_b32 v{u+2}, 0x01010101, v{u+2}", f"v_cmp_ne_u32 vcc, 0x01010101, v{u+2}"], 8)
        e(f"s_lshl_b32 s{S_T}, s{S_WAVE}, 8\ns_lshl_b32 s{S_T2}, s{S_J}, 4\ns_add_u32 s{S_T}, s{S_T}, s{S_T2}\ns_mul_i32 s{S_T}, s{S_T}, 5120\ns_add_u32 s{S_T}, s{S_T}, {WS_WT}")
        self.srd(e, 64, P_WS, f"s{S_T}", 0, 144 * 5120)
        e(f"v_add_u32 v{V_X1}, 4096, v{V_OST}")
        for _ in range(len(pool)):
            a_load()
        for i in range(4):
            e(f"s_add_u32 s{S_T}, s{S_WAVE}, {i}\ns_and_b32 s{S_T}, s{S_T}, 3\ns_lshl_b32 s{S_T}, s{S_T}, 15")
            e(f"v_add_u32 v{V_DMA+i}, s{S_T}, v{V_OST}")
        k = 0
        for uu in range(4):
            for t in range(7):
                dst = V_QF + (uu * 7 + t) * 4
                for half in range(2):
                    for pr in range(2):
                        t0 = V_S + (k % 4) * 2
                        k += 1
                        a = acc(2 * uu + half, t) + 2 * pr
                        e(f"v_accvgpr_read_b32 v{t0}, a{a}")
                        e(f"v_accvgpr_read_b32 v{t0+1}, a{a+1}")
                        e(f"v_pk_mul_f32 {vr(t0, 2)}, {vr(t0, 2)}, {vr(V_RL + 2*t, 2)}")
                        e(f"v_cvt_pk_bf16_f32 v{dst + half*2 + pr}, v{t0}, v{t0+1}")
                e(f"ds_write_b128 v{V_DMA}, {vr(dst)} offset:{(uu*7 + t)*1024}")
        pool.extend(late_pool)
        e(f"s_lshl_b32 s{S_T}, s{S_B}, 3\ns_lshl_b32 s{S_T2}, s{S_WAVE}, 1\ns_add_u32 s{S_T}, s{S_T}, s{S_T2}\ns_lshl_b32 s{S_T}, s{S_T}, 3\ns_add_u32 s{S_T}, s{S_T}, s{S_J}")
        e(f"s_mul_i32 s{S_T}, s{S_T}, {PT}")
        self.srd(e, 20, P_WS, f"s{S_T}", 0, 9 * PT)
        e(f"s_lshl_b32 s{S_T}, s{S_B}, 8\ns_lshl_b32 s{S_T3}, s{S_WAVE}, 6\ns_add_u32 s{S_T}, s{S_T}, s{S_T3}\ns_lshl_b32 s{S_T3}, s{S_J}, 2\ns_add_u32 s{S_T}, s{S_T}, s{S_T3}")
        e(f"v_mov_b32 v{u+5}, s{S_T}\nv_lshlrev_b32 v{u+4}, 3, v{V_LANE}")
        self.stamp(e, 5)

        CV = [6, 10, 14]

        def cvt_ops(ps, pair):
            g = CV[pair % 3]
            ops = []
            for h in range(2):
                ti = 2 * pair + h
                if ti >= 35:
                    break
                src = self.oacc(ps * 35 + ti)
                base = int(src[2:src.index(":")])
                for pr in range(2):
                    if src[0] == "a":
                        ta = u + 2 * pr
                        ops += [f"v_accvgpr_read_b32 v{ta}, a{base + 2*pr}", f"v_accvgpr_read_b32 v{ta+1}, a{base + 2*pr + 1}",
                                f"v_cvt_pk_bf16_f32 v{g + 2*h + pr}, v{ta}, v{ta+1}"]
                    else:
                        ops.append(f"v_cvt_pk_bf16_f32 v{g + 2*h + pr}, v{base + 2*pr}, v{base + 2*pr + 1}")
            off = ps * 8 * PT + pair * 1024
            ops.append(f"s_mov_b32 s{S_T3}, {off}")
            if 2 * pair + 1 < 35:
                ops.append(("vm", f"P{ps}", f"buffer_store_dwordx4 {vr(g)}, v{V_OST}, {SRD_O}, s{S_T3} offen sc1"))
            else:
                ops.append(("vm", f"P{ps}", f"buffer_store_dwordx2 {vr(g, 2)}, v{u+4}, {SRD_O}, s{S_T3} offen sc1"))
            return ops

        def flag(ps):
            e(f"v_mov_b32 v{u}, 1")
            self.put(e, [("vm", "fl", f"buffer_store_dword v{u}, v{u+5}, {SRD_FL}, 0 offen offset:{32*ps} sc1")])

        done = {}
        for n, (k, ia, t) in enumerate(work):
            done[(seq[k][0], ia * 7 + t)] = n
        pending = [(done[(ps, min(34, 2 * pr + 1))] + 6, ps, pr) for ps in range(2) for pr in range(18)]
        pending.sort()
        side = []
        flag0_at = None
        for n, (k, ia, t) in enumerate(work):
            ps, st = seq[k]
            if n == self.o.barstep * 35:
                e("s_waitcnt lgkmcnt(0)\ns_barrier")
                state["bar"] = True
                self.stamp(e, 6)
            while pending and pending[0][0] <= n:
                _, p2, pr = pending.pop(0)
                side += cvt_ops(p2, pr)
                if p2 == 0 and pr == 17:
                    side.append("END0")
            while ("A", k, ia) not in loc:
                assert a_load(), "pool exhausted (A)"
            need_vm(f"A{k}_{ia}")
            bk = bkey(k, t)
            while bk not in loc:
                assert b_load(n), "pool exhausted (B)"
            need_b(bk)
            d = self.oacc(ps * 35 + ia * 7 + t)
            c = "0" if st == 0 else d
            e(f"{MFMA} {d}, {loc[('A', k, ia)]}, {loc[bk]}, {c}")
            used = 0
            if b_load(n + 30):
                used += 1
            elif state["nA"] < self.o.maxA and (len(pool) > 7 or not todoB or not state["bar"]) and a_load():
                used += 1
            while side and used < 2:
                x = side.pop(0)
                if x == "END0":
                    flag0_at = n + self.o.flagdelay
                else:
                    self.put(e, [x])
                    used += 1
            if flag0_at is not None and n == flag0_at:
                assert not side
                need_vm("P0")
                flag(0)
            if lastB[bk] == n:
                pool.append(loc[bk])
            if lastA[(k, ia)] == n:
                pool.append(loc[("A", k, ia)])
                state["nA"] -= 1
        self.stamp(e, 7)
        for _, p2, pr in pending:
            side += cvt_ops(p2, pr)
        self.put(e, side)
        self.stamp(e, 10)
        S_JC, S_PB = S_DW[0], S_DW[1]
        e(f"s_and_b32 s{S_JC}, s{S_J}, 6\ns_and_b32 s{S_PB}, s{S_J}, 1\ns_mul_i32 s{S_PB}, s{S_PB}, 9\ns_add_u32 s{S_PB}, s{S_PB}, s{S_WAVE}")
        e(f"s_lshl_b32 s{S_T}, s{S_B}, 3\ns_add_u32 s{S_T}, s{S_T}, s{S_JC}\ns_lshl_b32 s{S_T2}, s{S_T}, 5\ns_mul_i32 s{S_T}, s{S_T}, {8*PT}")
        self.srd(e, 64, P_WS, f"s{S_T}", 0, 16 * PT)
        e(f"v_and_b32 v{u+1}, 7, v{V_LANE}\nv_lshlrev_b32 v{u+1}, 2, v{u+1}")
        e(f"s_mul_i32 s{S_T3}, s{S_JC}, 160\ns_mul_i32 s{S_T}, s{S_B}, 143360\ns_add_u32 s{S_T}, s{S_T}, s{S_T3}")
        e(f"s_add_u32 s72, s{P_OUT}, s{S_T}\ns_addc_u32 s73, s{P_OUT+1}, 0\ns_sub_u32 s74, 143360, s{S_T3}\ns_mov_b32 s75, 0x20000")
        e(f"v_and_b32 v2, 15, v{V_LANE}\nv_lshrrev_b32 v3, 4, v{V_LANE}\nv_mul_u32_u24 v2, 1280, v2\nv_lshl_add_u32 v2, v3, 3, v2")
        e(f"s_lshl_b32 s{S_T}, s{S_PB}, 10\nv_add_u32 v4, s{S_T}, v{V_OST}")
        e(f"s_bitcmp1_b32 s{S_J}, 0\ns_cselect_b32 s{S_Q}, 3, 4\nv_lshlrev_b32 v5, s{S_Q}, v{V_LANE}\nv_add_u32 v5, s{S_T}, v5")
        e(f"s_mov_b32 s{S_DW[2]}, 0xffff0000")

        def red_loads(ps):
            for k in range(3):
                for src in range(8):
                    e(f"s_mov_b32 s{S_T3}, {ps*8*PT + src*PT + k*4096}")
                    self.put(e, [("vm", f"r{ps}{k}", f"buffer_load_dwordx4 {vr(24 + (k*8 + src)*4)}, v{4 if k < 2 else 5}, {SRD_WT}, s{S_T3} offen sc1")])

        def red_sums(ps):
            for k in range(3):
                if k == 2:
                    e(f"s_cmp_lg_u32 s{S_WAVE}, 0\ns_cbranch_scc1 L_red{ps}_done")
                need_vm(f"r{ps}{k}")
                A = 200
                for src in range(8):
                    r = 24 + (k * 8 + src) * 4
                    for i in range(4):
                        d = A + 2 * i if src == 0 else A + 8 + 2 * (i & 1)
                        e(f"v_lshlrev_b32 v{d}, 16, v{r+i}")
                        e(f"v_and_b32 v{d+1}, s{S_DW[2]}, v{r+i}")
                        if src:
                            e(f"v_pk_add_f32 {vr(A+2*i, 2)}, {vr(A+2*i, 2)}, {vr(d, 2)}")
                O = 212 + (k % 2) * 4
                for i in range(4):
                    e(f"v_cvt_pk_bf16_f32 v{O+i}, v{A+2*i}, v{A+2*i+1}")
                for h in range(2):
                    e(f"s_lshl_b32 s{S_T}, s{S_PB}, 1\ns_add_u32 s{S_T}, s{S_T}, {8*k + h}")
                    e(f"s_mul_i32 s{S_Q}, s{S_T}, 37\ns_lshr_b32 s{S_Q}, s{S_Q}, 8")
                    e(f"s_mul_i32 s{S_T3}, s{S_Q}, 7\ns_sub_u32 s{S_T3}, s{S_T}, s{S_T3}")
                    e(f"s_mul_i32 s{S_T3}, s{S_T3}, 20480\ns_lshl_b32 s{S_Q}, s{S_Q}, 5\ns_add_u32 s{S_T3}, s{S_T3}, s{S_Q}")
                    if k == 2 and h == 1:
                        e(f"s_bitcmp1_b32 s{S_J}, 0\ns_cbranch_scc1 L_red{ps}_done")
                    e(f"buffer_store_dwordx2 {vr(O + 2*h, 2)}, v2, {SRD_OUT}, s{S_T3} offen offset:{160*ps}")
                    self.vq.issue("st")
            e(f"L_red{ps}_done:")

        self.poll(e, "pollp0", f"buffer_load_dword v{u+2}, v{u+1}, {SRD_FL}, s{S_T2} offen sc1",
                  [f"v_mov_b32 v{u}, 1\nbuffer_store_dword v{u}, v{u+5}, {SRD_FL}, 0 offen offset:32 sc1", f"v_cmp_ne_u32 vcc, 1, v{u+2}"], 1)
        self.stamp(e, 11)
        self.vq.q = []
        state["covered"] = -1
        red_loads(0)
        red_sums(0)
        self.stamp(e, 12)
        self.poll(e, "pollp1", f"buffer_load_dword v{u+2}, v{u+1}, {SRD_FL}, s{S_T2} offen offset:32 sc1",
                  [f"v_cmp_ne_u32 vcc, 1, v{u+2}"], 1)
        self.stamp(e, 9)
        self.vq.q = []
        state["covered"] = -1
        red_loads(1)
        red_sums(1)
        self.stamp(e, 14)
        if self.o.stamps:
            e("s_waitcnt vmcnt(0) lgkmcnt(0)")
            self.stamp(e, 8)
            e(f"s_lshl_b32 s{S_T}, s2, 2\ns_add_u32 s{S_T}, s{S_T}, s{S_WAVE}\ns_lshl_b32 s{S_T}, s{S_T}, 7\ns_add_u32 s{S_T}, s{S_T}, {WS_ST}")
            self.srd(e, 76, P_WS, f"s{S_T}", 0, 128)
            e(f"v_lshlrev_b32 v2, 2, v{V_LANE}")
            e(f"buffer_store_dword v{V_STAMP}, v2, {SRD_AUX}, 0 offen")
        e("L_end:\ns_endpgm")
        return e

    def build(self):
        pro = self.prologue()
        q = self.qphase()
        if self.o.qdrop:
            q.ins = [i for i in q.ins if not any(i.text.startswith(d) for d in self.o.qdrop.split(","))]
        conv = self.convert()
        u = V_U
        s0 = Seg("SP0")
        self.stamp(s0, 3)
        self.superphase(s0, 0, mode="first", pv=False, exact=True)
        self.wo_piece(s0)
        s1 = Seg("SP1")
        self.superphase(s1, 1, pvzero=True, exact=True, slow_label="L_slowP")
        self.srd(s1, 76, P_DBG, 0, 0, 256)
        s1(f"v_mov_b32 v{u}, 1\nv_mov_b32 v{V_X1}, s2")
        self.put(s1, [("wait", "wst")])
        s1("s_barrier")
        s1(f"s_cmp_lg_u32 s{S_WAVE}, 0\ns_cbranch_scc1 L_nopub")
        s1(f"buffer_store_byte v{u}, v{V_X1}, {SRD_AUX}, 0 offen sc1")
        s1("L_nopub:")
        s1(f"s_mov_b32 s{S_CNT}, 2")
        le = Seg("SPe")
        le("L_loop:")
        self.superphase(le, 2, slow_label="L_slowE")
        lo = Seg("SPo")
        self.superphase(lo, 3, slow_label="L_slowO")
        lo(f"s_add_u32 s{S_CNT}, s{S_CNT}, 2\ns_cmp_lt_u32 s{S_CNT}, 16\ns_cbranch_scc1 L_loop")
        tl = Seg("SPtail")
        tl(f"v_lshlrev_b32 v{u+3}, 2, v{V_LANE}")
        tl(f"buffer_load_dword v{u+2}, v{u+3}, {SRD_AUX}, 0 offen sc1")
        tl("s_waitcnt lgkmcnt(0)")
        self.superphase(tl, 16, qk=False)
        fin = self.tail()
        slow = self.slowpath()
        n = fix_path([pro, q, conv, s0, s1, le, lo, tl, fin], verbose=self.o.verbose)
        n += fix_path([slow], verbose=self.o.verbose)
        for path in ([lo, le, lo, le], [lo, tl]):
            fix_path(path, insert=False)
        print(f"inserted {n} wait states", file=sys.stderr)
        return [pro, q, conv, s0, s1, le, lo, tl, fin, slow]


HEADER = """; Kernarg layout for this problem (64 bytes, ptrs only, base s[0:1]):
; One launch, one workgroup per CU, one wave per (batch, head): Q projection, flash attention over an
"""


def main():
    ap = argparse.ArgumentParser()
    ap.add_argument("-o", default="standalone__gqa_block_cached__near_ridge.s")
    ap.add_argument("--kvflags", default="nt")
    ap.add_argument("--thresh", type=float, default=1048576.0)
    ap.add_argument("--stamps", type=int, default=0)
    ap.add_argument("--verbose", action="store_true")
    ap.add_argument("--rotb", type=int, default=1)
    ap.add_argument("--wi", type=int, default=1)
    ap.add_argument("--barstep", type=int, default=6)
    ap.add_argument("--maxA", type=int, default=16)
    ap.add_argument("--flagdelay", type=int, default=140)
    ap.add_argument("--oi", type=int, default=1)
    ap.add_argument("--oj", type=int, default=1)
    ap.add_argument("--rb", type=int, default=0)
    ap.add_argument("--preA", type=int, default=8)
    ap.add_argument("--maxq", type=int, default=40)
    ap.add_argument("--pollstep", type=int, default=2)
    ap.add_argument("--qab", default="")
    ap.add_argument("--qdrop", default="")
    ap.add_argument("--wj", type=int, default=1)
    ap.add_argument("--wostep", type=int, default=3)
    ap.add_argument("--nokv", type=int, default=0)
    ap.add_argument("--pflo", type=int, default=0)
    ap.add_argument("--pfhi", type=int, default=16)
    ap.add_argument("--vspan", type=int, default=60)
    ap.add_argument("--spin", type=int, default=200000)
    o = ap.parse_args()
    segs = Gen(o).build()
    out = [HEADER.rstrip("\n")]
    out.append("; @launch grid=(256,1,1) block=(256,1,1) lds=163840")
    out.append('.amdgcn_target "amdgcn-amd-amdhsa--gfx950"\n.text')
    out.append(f".globl {KN}\n.p2align 8\n.type {KN},@function\n{KN}:")
    for s in segs:
        out.append(f"; ---- {s.name}")
        out.append(s.text())
    out.append('.section .rodata,"a"\n.p2align 6')
    out.append(f""".amdhsa_kernel {KN}
  .amdhsa_next_free_vgpr 512
  .amdhsa_next_free_sgpr 102
  .amdhsa_accum_offset 256
  .amdhsa_group_segment_fixed_size 0
  .amdhsa_kernarg_size 64
  .amdhsa_user_sgpr_count 2
  .amdhsa_user_sgpr_kernarg_segment_ptr 1
  .amdhsa_system_sgpr_workgroup_id_x 1
.end_amdhsa_kernel
""")
    open(o.o, "w").write("\n".join(out))


main()
```

```python
import sys, re, struct, argparse
from asmlib import Seg, fix_path, VmQueue

KN = "standalone__gqa_block_cached__near_ridge_kernel"
MFMA = "v_mfma_f32_16x16x32_bf16"


def f32bits(x):
    return struct.unpack("<I", struct.pack("<f", x))[0]


CSCALE = 1.4426950408889634 * (128 ** -0.5)

S_WAVE = 3
SRD_X, SRD_WQ, SRD_K, SRD_V, SRD_O = "s[4:7]", "s[8:11]", "s[12:15]", "s[16:19]", "s[20:23]"
S_M = [24, 25, 26, 27, 28, 29, 30, 31]
S_T = 32
S_C = 33
S_SEL0, S_SEL1 = 34, 35
S_WQOFF = 36
S_XOFF = 37
S_XLDS = 38
S_T2, S_T3 = 39, 40
S_CNT = 41
S_KOFF, S_KOFF2, S_VOFF, S_VOFF2 = 42, 43, 44, 45
S_OOFF, S_WOFF, S_SPIN, S_CALL = 46, 47, 48, 49
S_RET = 50
S_ROLE = 51
S_G = 34
S_P = 35
S_HB = 36
S_Q = 37
S_WOFF2 = 38
S_DW = [52, 53, 54, 55]
S_DX = [56, 57, 58, 59]
S_WQT, S_XT = 60, 61
S_OFF = 62
S_WLDS = 63
SRD_WT = "s[64:67]"
SRD_FL = "s[68:71]"
SRD_OUT = "s[72:75]"
SRD_AUX = "s[76:79]"
P_X, P_K, P_V, P_WQ, P_WO, P_OUT, P_DBG, P_WS = 80, 82, 84, 86, 88, 90, 92, 94
S_B, S_J, S_H, S_PAIR = 96, 97, 98, 99

V_LANE = 0
V_X1 = 1
V_DMA = 2
V_KA = 6
V_VA = 10
V_U = 18
V_QF = 24
V_VF = 136
V_S = 168
V_P = 184
V_NM = 212
V_L = 240
V_RL = 228
A_KF = 224
V_STAMP = 255
V_RAW = 24
V_XF = 168
V_AF = 224
V_WQ8 = 232
V_XS = 240
V_XRD = 242
V_WT = 244
V_OST = 254
V_L2 = 250
SLOT = 8192
XBUF = 16 * SLOT
NRAW = 3

WS_WT = 32 << 20
WS_FL = 48 << 20

WS_ST = 64 << 20


def vr(b, n=4):
    return f"v[{b}:{b+n-1}]"


def ar(b, n=4):
    return f"a[{b}:{b+n-1}]"


def acc(j, t):
    return (j * 7 + t) * 4


def spread(fillers, ops, lo, hi):
    n = hi - lo
    for k, op in enumerate(ops):
        idx = lo + (k * n) // len(ops)
        fillers.setdefault(idx, []).append(op)


class Gen:
    def __init__(self, opt):
        self.o = opt
        self.vq = VmQueue()
        self.kvflags = opt.kvflags
        self.nlabel = 0

    def label(self, base):
        self.nlabel += 1
        return f"L_{base}{self.nlabel}"

    def stamp(self, seg, i):
        if self.o.stamps:
            seg(f"s_mem{'' if self.o.stamps == 2 else 'real'}time s[100:101]")
            seg("s_waitcnt lgkmcnt(0)")
            seg(f"v_writelane_b32 v{V_STAMP}, s100, {2*i}")
            seg(f"v_writelane_b32 v{V_STAMP}, s101, {2*i+1}")

    def emit_list(self, lst):
        out = []
        for x in lst:
            if isinstance(x, tuple):
                if x[0] == "vm":
                    self.vq.issue(x[1])
                    out.append(x[2])
                elif x[0] == "wait":
                    out.append(f"s_waitcnt vmcnt({min(63, self.vq.wait_for(x[1]))})")
            else:
                out.append(x)
        return out

    def put(self, seg, lst):
        for s in self.emit_list(lst):
            seg(s)

    def interleave(self, seg, mfmas, fillers):
        self.put(seg, fillers.get(-1, []))
        for i, m in enumerate(mfmas):
            seg(m)
            self.put(seg, fillers.get(i, []))

    @staticmethod
    def srd(p, d, base, off_lo, off_hi, nrec):
        p(f"s_add_u32 s{d}, s{base}, {off_lo}\ns_addc_u32 s{d+1}, s{base+1}, {off_hi}")
        p(f"s_mov_b32 s{d+2}, {nrec}\ns_mov_b32 s{d+3}, 0x20000")

    def prologue(self):
        p = Seg("prologue")
        p("s_cmp_ge_u32 s2, 256\ns_cbranch_scc1 L_end")
        if self.o.stamps:
            p("s_memrealtime s[76:77]")
        p(f"s_load_dwordx16 s[{P_X}:{P_X+15}], s[0:1], 0")
        n, g, t0, t1 = V_U, V_U + 1, V_U + 2, V_U + 3
        p(f"v_lshrrev_b32 v{t0}, 6, v0")
        p(f"v_mov_b32 v{V_X1}, v0")
        p(f"v_and_b32 v{V_LANE}, 63, v0")
        p(f"v_readfirstlane_b32 s{S_WAVE}, v{t0}")
        if self.o.stamps:
            p(f"v_mov_b32 v{V_STAMP}, 0")
        if self.o.codepf:
            p("s_getpc_b64 s[72:73]")
            p("s_and_b32 s72, s72, 0xffffff00")
            p(f"s_mov_b32 s74, {self.o.codepf}\ns_mov_b32 s75, 0x20000")
            p(f"s_lshr_b32 s{S_T}, s2, 3\ns_lshl_b32 s{S_T}, s{S_T}, 12")
            p(f"v_lshlrev_b32 v{t1}, 4, v{V_X1}")
            p(f"buffer_load_dwordx4 {ar(A_KF)}, v{t1}, {SRD_OUT}, s{S_T} offen")
        nb = self.o.nb
        lnb = nb.bit_length() - 1
        nhg = 32 // nb
        lhg = nhg.bit_length() - 1
        xh = 8 // nhg
        lxh = xh.bit_length() - 1
        p(f"s_and_b32 s{S_T2}, s2, 7\ns_lshr_b32 s{S_T3}, s2, 3")
        p(f"s_lshr_b32 s{S_B}, s{S_T2}, {lxh}\ns_lshl_b32 s{S_B}, s{S_B}, {lnb}\ns_lshr_b32 s{S_T}, s{S_T3}, {lhg}\ns_add_u32 s{S_B}, s{S_B}, s{S_T}")
        p(f"s_and_b32 s{S_J}, s{S_T2}, {xh-1}\ns_lshl_b32 s{S_J}, s{S_J}, {lhg}\ns_and_b32 s{S_T}, s{S_T3}, {nhg-1}\ns_add_u32 s{S_J}, s{S_J}, s{S_T}")
        p(f"s_lshl_b32 s{S_H}, s{S_J}, 2\ns_add_u32 s{S_H}, s{S_H}, s{S_WAVE}")
        p(f"s_lshl_b32 s{S_PAIR}, s{S_B}, 5\ns_add_u32 s{S_PAIR}, s{S_PAIR}, s{S_H}")
        p(f"v_and_b32 v{n}, 15, v{V_LANE}")
        p(f"v_lshrrev_b32 v{g}, 4, v{V_LANE}")
        p(f"v_lshlrev_b32 v{t0}, 16, v{g}")
        p(f"v_lshl_add_u32 v{V_WQ8}, v{n}, 4, v{t0}")
        for i in range(1, 8):
            p(f"v_add_u32 v{V_WQ8+i}, {i*8192}, v{V_WQ8}")
        p(f"v_lshrrev_b32 v{t0}, 4, v{V_LANE}")
        p(f"v_and_b32 v{t1}, 7, v{V_LANE}")
        p(f"v_xor_b32 v{t0}, v{t0}, v{t1}")
        p(f"v_lshlrev_b32 v{t0}, 4, v{t0}")
        p(f"v_lshrrev_b32 v{t1}, 3, v{V_LANE}")
        p(f"s_lshl_b32 s{S_T}, s{S_WAVE}, 5")
        p(f"v_add_u32 v{t1}, s{S_T}, v{t1}")
        p(f"v_mul_u32_u24 v{t1}, 1280, v{t1}")
        p(f"v_add_u32 v{V_XS}, v{t0}, v{t1}")
        p(f"v_xor_b32 v{V_XS+1}, 64, v{V_XS}")
        p(f"v_add_u32 v{V_XS+1}, 10240, v{V_XS+1}")
        p(f"s_lshl_b32 s{S_XLDS}, s{S_WAVE}, 12\ns_add_u32 s{S_XLDS}, s{S_XLDS}, {XBUF}")
        p(f"s_and_b32 s{S_T}, s2, 7\ns_mul_i32 s{S_T}, s{S_T}, {self.o.rotb}")
        p(f"s_mul_i32 s{S_T3}, s{S_T}, 13108\ns_lshr_b32 s{S_T3}, s{S_T3}, 16\ns_mul_i32 s{S_T3}, s{S_T3}, 5\ns_sub_u32 s{S_T}, s{S_T}, s{S_T3}")
        p(f"s_lshl_b32 s{S_WQOFF}, s{S_T}, 20\ns_lshl_b32 s{S_XOFF}, s{S_T}, 8")
        p(f"s_mul_i32 s{S_T}, s{S_B}, {self.o.wi}\ns_mul_i32 s{S_T3}, s{S_J}, {self.o.wj}\ns_add_u32 s{S_T}, s{S_T}, s{S_T3}")
        p(f"s_and_b32 s{S_OFF}, s{S_T}, 3")
        for c in range(4):
            p(f"s_xor_b32 s{S_T3}, s{S_OFF}, {c}\ns_lshl_b32 s{S_DW[c]}, s{S_T3}, 18")
        p(f"s_lshr_b32 s{S_T3}, s{S_OFF}, 1\ns_lshl_b32 s{S_DX[0]}, s{S_T3}, 7\ns_xor_b32 s{S_DX[1]}, s{S_DX[0]}, 128")
        p(f"s_mul_i32 s{S_T3}, s{S_B}, 143360")
        p(f"s_lshl_b32 s{S_T}, s{S_H}, 8")
        p("s_waitcnt lgkmcnt(0)")
        self.srd(p, 4, P_X, f"s{S_T3}", 0, 143360)
        p(f"s_add_u32 s8, s{P_WQ}, s{S_T}\ns_addc_u32 s9, s{P_WQ+1}, 0\ns_sub_u32 s10, 5242880, s{S_T}\ns_mov_b32 s11, 0x20000")
        if "x" in self.o.qab:
            p("s_mov_b32 s6, 0")
        if "w" in self.o.qab:
            p("s_mov_b32 s10, 0")
        lst = [f"s_add_u32 s{S_WQT}, s{S_WQOFF}, s{S_DW[0]}"]
        lst += self.x_dma(0)
        lst += self.wq_loads(0)
        lst += self.x_dma(1)
        for s in range(1, NRAW - 1):
            lst += self.wq_loads(s)
        self.put(p, lst)
        self.stamp(p, 13)
        if self.o.stamps:
            p(f"v_writelane_b32 v{V_STAMP}, s76, 0\nv_writelane_b32 v{V_STAMP}, s77, 1")
        p(f"s_lshl_b32 s{S_T}, s{S_PAIR}, 17\ns_lshr_b32 s{S_T3}, s{S_PAIR}, 15")
        nr = 0 if self.o.nokv else 131072
        self.srd(p, 12, P_K, f"s{S_T}", f"s{S_T3}", nr)
        self.srd(p, 16, P_V, f"s{S_T}", f"s{S_T3}", nr)
        p(f"s_lshl_b32 s{S_M[0]}, s{S_WAVE}, 15")
        for r in range(1, 8):
            p(f"s_add_u32 s{S_M[r]}, s{S_M[0]}, {r*4096}")
        for i in range(4):
            p(f"v_add_u32 v{t0}, {4*i}, v{g}")
            p(f"v_and_b32 v{t1}, 7, v{t0}")
            p(f"v_lshlrev_b32 v{t1}, 1, v{t1}")
            p(f"v_lshrrev_b32 v{t0}, 3, v{t0}")
            p(f"v_or_b32 v{t0}, v{t0}, v{t1}")
            p(f"v_xor_b32 v{t0}, v{t0}, v{n}")
            p(f"v_lshlrev_b32 v{t0}, 4, v{t0}")
            p(f"v_lshl_add_u32 v{V_DMA+i}, v{g}, 8, v{t0}")
        for k in range(self.o.pf0):
            self.put(p, self.pf_dma(k))
        self.srd(p, 68, P_WS, WS_FL, 0, 8192)
        p(f"s_lshl_b32 s{S_T}, s{S_B}, 8\ns_lshl_b32 s{S_T3}, s{S_WAVE}, 6\ns_add_u32 s{S_T}, s{S_T}, s{S_T3}\ns_lshl_b32 s{S_T3}, s{S_J}, 2\ns_add_u32 s{S_T}, s{S_T}, s{S_T3}")
        p(f"v_mov_b32 v{t0}, 0\nv_mov_b32 v{t1}, s{S_T}")
        self.put(p, [("vm", "zf", f"buffer_store_dword v{t0}, v{t1}, {SRD_FL}, 0 offen sc1")])
        self.put(p, [("vm", "zf", f"buffer_store_dword v{t0}, v{t1}, {SRD_FL}, 0 offen offset:32 sc1")])
        p(f"s_lshl_b32 s{S_T}, s2, 2\ns_add_u32 s{S_T}, s{S_T}, s{S_WAVE}")
        p(f"s_lshr_b32 s{S_T2}, s{S_T}, 3\ns_and_b32 s{S_T3}, s{S_T}, 7")
        p(f"s_mul_i32 s{S_T}, s{S_T2}, 40960\ns_mul_i32 s{S_CNT}, s{S_T3}, 160\ns_add_u32 s{S_T}, s{S_T}, s{S_CNT}")
        p(f"s_add_u32 s76, s{P_WO}, s{S_T}\ns_addc_u32 s77, s{P_WO+1}, 0\ns_sub_u32 s78, 40960, s{S_CNT}\ns_mov_b32 s79, 0x20000")
        p(f"s_lshl_b32 s{S_T}, s{S_T3}, 7\ns_add_u32 s{S_T}, s{S_T}, s{S_T2}\ns_mul_i32 s{S_T}, s{S_T}, 5120\ns_add_u32 s{S_T}, s{S_T}, {WS_WT}")
        self.srd(p, 64, P_WS, f"s{S_T}", 0, 5120)
        if "o" in self.o.qab:
            p("s_mov_b32 s78, 0\ns_mov_b32 s66, 0")
        p(f"s_movk_i32 s{S_T}, 6554")
        for i in range(5):
            p(f"v_add_u32 v{t0}, {64*i}, v{V_LANE}")
            p(f"v_mul_lo_u32 v{t1}, v{t0}, s{S_T}")
            p(f"v_lshrrev_b32 v{t1}, 16, v{t1}")
            p(f"v_mul_u32_u24 v{t1}, 1120, v{t1}")
            p(f"v_lshl_add_u32 v{V_WT+i}, v{t0}, 4, v{t1}")
        p(f"v_lshrrev_b32 v{t0}, 2, v{V_LANE}")
        p(f"v_mul_u32_u24 v{t0}, 160, v{t0}")
        p(f"v_and_b32 v{t1}, 3, v{V_LANE}")
        p(f"v_lshl_add_u32 v{t0}, v{t1}, 3, v{t0}")
        p(f"s_lshl_b32 s{S_WLDS}, s{S_WAVE}, 13\ns_add_u32 s{S_WLDS}, s{S_WLDS}, {XBUF}")
        p(f"v_add_u32 v{V_X1}, s{S_WLDS}, v{t0}")
        p(f"v_lshrrev_b32 v{t0}, 1, v{n}")
        p(f"v_xor_b32 v{t0}, v{t0}, v{g}")
        p(f"v_lshlrev_b32 v{t0}, 4, v{t0}")
        p(f"v_lshl_add_u32 v{t0}, v{n}, 7, v{t0}")
        p(f"v_add_u32 v{t0}, {XBUF}, v{t0}")
        p(f"s_and_b32 s{S_T}, s{S_OFF}, 1\ns_lshl_b32 s{S_T}, s{S_T}, 6")
        p(f"v_xor_b32 v{V_XRD}, s{S_T}, v{t0}")
        p(f"v_xor_b32 v{V_XRD+1}, 64, v{V_XRD}")
        p(f"v_and_b32 v{t1}, 7, v{n}")
        p(f"v_lshlrev_b32 v{t1}, 1, v{t1}")
        p(f"v_lshrrev_b32 v{t0}, 3, v{n}")
        p(f"v_or_b32 v{t0}, v{t0}, v{t1}")
        p(f"v_lshlrev_b32 v{t1}, 2, v{g}")
        p(f"v_xor_b32 v{t0}, v{t0}, v{t1}")
        p(f"v_lshlrev_b32 v{t0}, 4, v{t0}")
        p(f"v_lshl_add_u32 v{t0}, v{n}, 8, v{t0}")
        p(f"v_add_u32 v{V_KA}, s{S_M[0]}, v{t0}")
        for kk in range(1, 4):
            p(f"v_xor_b32 v{V_KA+kk}, {kk << 4}, v{V_KA}")
        m_, c_ = n, g
        p(f"v_lshrrev_b32 v{m_}, 2, v{V_LANE}")
        p(f"v_and_b32 v{c_}, 3, v{V_LANE}")
        p(f"v_and_b32 v{t1}, 7, v{m_}")
        p(f"v_lshlrev_b32 v{t1}, 1, v{t1}")
        p(f"v_lshrrev_b32 v{t0}, 3, v{m_}")
        p(f"v_or_b32 v{t0}, v{t0}, v{t1}")
        p(f"v_lshrrev_b32 v{t1}, 1, v{c_}")
        p(f"v_xor_b32 v{t0}, v{t0}, v{t1}")
        p(f"v_lshlrev_b32 v{t0}, 4, v{t0}")
        p(f"v_lshl_add_u32 v{t0}, v{m_}, 8, v{t0}")
        p(f"v_and_b32 v{t1}, 1, v{c_}")
        p(f"v_lshl_add_u32 v{t0}, v{t1}, 3, v{t0}")
        p(f"v_add_u32 v{V_VA}, s{S_M[0]}, v{t0}")
        for d in range(1, 8):
            p(f"v_xor_b32 v{V_VA+d}, {d << 5}, v{V_VA}")
        p(f"v_lshlrev_b32 v{V_OST}, 4, v{V_LANE}")
        p(f"v_lshlrev_b32 v{V_L2}, 7, v{V_LANE}")
        p(f"s_mov_b32 s{S_C}, {f32bits(CSCALE):#x}")
        p(f"s_mov_b32 s{S_SEL0}, 0x05040100\ns_mov_b32 s{S_SEL1}, 0x07060302")
        self.put(p, [("wait", "x0")])
        p("s_barrier")
        for t in range(7):
            p(f"ds_read_b128 {vr(V_XF + t*4)}, v{V_XRD} offset:{t*2048}")
        self.put(p, [("wait", "wq0")])
        for s in self.perms(0, 0):
            p(s)
        self.stamp(p, 1)
        return p

    def x_dma(self, m):
        out = [f"s_add_u32 s{S_XT}, s{S_XOFF}, s{S_DX[m % 2]}"]
        for i in range(4):
            out.append(f"s_add_u32 m0, s{S_XLDS}, {(m % 2)*16384 + i*1024}")
            if i == 2:
                out.append(f"s_add_u32 s{S_XT}, s{S_XT}, 20480")
            out.append(("vm", f"x{m}", f"buffer_load_dwordx4 v{V_XS + (i & 1)}, {SRD_X}, s{S_XT} offen lds"))
        if m % 2 == 1:
            out += [f"s_add_u32 s{S_XOFF}, s{S_XOFF}, 256", f"s_cmp_ge_u32 s{S_XOFF}, 1280", f"s_cselect_b32 s{S_XOFF}, 0, s{S_XOFF}"]
        return out

    def wq_loads(self, s):
        base = V_RAW + (s % NRAW) * 32
        out = []
        for i in range(8):
            out.append(("vm", f"wq{s}", f"buffer_load_dwordx4 {vr(base + i*4)}, v{V_WQ8+i}, {SRD_WQ}, s{S_WQT} offen"))
        if s % 4 == 3:
            out += [f"s_add_u32 s{S_WQOFF}, s{S_WQOFF}, {8192*128}",
                    f"s_cmp_ge_u32 s{S_WQOFF}, 5242880", f"s_cselect_b32 s{S_WQOFF}, 0, s{S_WQOFF}"]
        out.append(f"s_add_u32 s{S_WQT}, s{S_WQOFF}, s{S_DW[(s + 1) % 4]}")
        return out

    def perms(self, s, j):
        base = V_RAW + (s % NRAW) * 32
        d = V_AF + (j & 1) * 4
        sel = S_SEL1 if (j & 1) else S_SEL0
        return [f"v_perm_b32 v{d+r}, v{base + (2*r+1)*4 + (j >> 1)}, v{base + (2*r)*4 + (j >> 1)}, s{sel}" for r in range(4)]

    def pf_dma(self, k):
        q, i = k // 8, k % 8
        srd = SRD_K if q % 2 == 0 else SRD_V
        tag = ("K" if q % 2 == 0 else "V") + str(q // 2)
        out = [f"s_mov_b32 m0, s{S_M[(q % 4)*2 + i // 4]}"]
        if i % 4 == 0:
            out.append(f"s_movk_i32 s{S_KOFF}, {(q // 2)*8192 + (i // 4)*4096}")
        out.append(("vm", tag, f"buffer_load_dwordx4 v{V_DMA + i % 4}, {srd}, s{S_KOFF} offen offset:{(i % 4)*1024} {self.kvflags} lds"))
        return out

    def qstep(self, seg, s, pf):
        NS = 20
        xf = V_XF + (s & 1) * 28
        xn = V_XF + ((s + 1) & 1) * 28
        mf = []
        for j in range(8):
            for t in range(7):
                c = "0" if s == 0 else ar(acc(j, t))
                mf.append(f"{MFMA} {ar(acc(j,t))}, {vr(V_AF+(j&1)*4)}, {vr(xf+t*4)}, {c}")
        fl = {-1: ["s_waitcnt lgkmcnt(0)"]}
        for j in range(8):
            if j < 7:
                ops = self.perms(s, j + 1)
            elif s + 1 < NS:
                ops = [("wait", f"wq{s+1}")] + self.perms(s + 1, 0)
            else:
                ops = []
            if ops:
                spread(fl, ops, j * 7, j * 7 + 4 + (1 if j == 7 else 0))
        groups = []
        if s + NRAW - 1 < NS:
            w = self.wq_loads(s + NRAW - 1)
            groups += [[x] for x in w[:7]] + [w[7:]]
        after = []
        BAR = 20
        bar = (s % 2 == 1)
        nx = 0
        if bar and (s + 3) // 2 < 10:
            x = self.x_dma((s + 3) // 2)
            after += [x[0:3], x[3:5], x[5:8], x[8:]]
            nx = 4
        for k in pf:
            after.append(self.pf_dma(k))
        if s == self.o.fragstep:
            ops = [("wait", "V0")] + self.k_reads(0)
            for d in range(8):
                ops += self.v_read(0, d)
            spread(fl, ops[:13], 1, 20)
            spread(fl, ops[13:], 32, 54)
        if self.o.l2pf:
            steps = [int(x) for x in self.o.l2pf.split(",")]
            for idx, st in enumerate(steps):
                if st == s:
                    srd = SRD_K if idx % 2 == 0 else SRD_V
                    off = (2 + idx // 2) * 8192
                    after.append([f"s_mov_b32 s{S_T2}, {off}",
                                  ("vm", "l2", f"buffer_load_dword v{V_L2+1}, v{V_L2}, {srd}, s{S_T2} offen {self.o.l2flags}")])
        if s == NS - 1:
            for i in range(5):
                after.append([f"s_add_u32 m0, s{S_WLDS}, {i*1024}",
                              ("vm", "wo", f"buffer_load_dwordx4 v{V_WT+i}, {SRD_AUX}, 0 offen lds")])
        pre_n = min(len(groups), 4)
        for gq, pos in zip(groups[:pre_n], [2, 6, 11, 16]):
            for k, op in enumerate(gq):
                fl.setdefault(pos + k, []).append(op)
        if bar:
            mid = [("wait", f"x{(s+1)//2}"), "s_barrier"] if s + 1 < NS else ["s_barrier"]
            fl.setdefault(BAR, []).extend(mid)
        if s + 1 < NS:
            for t in range(7):
                fl.setdefault(BAR + 1 + t + (t + 3) // 4, []).append(
                    f"ds_read_b128 {vr(xn + t*4)}, v{V_XRD + ((s+1) & 1)} offset:{(((s+1)//2) % 2)*16384 + t*2048}")
        rest = after[:nx] + groups[pre_n:] + after[nx:]
        if rest:
            lo, hi = BAR + 5, 53
            last = 0
            for k, gq in enumerate(rest):
                pos = lo + (k * (hi - lo)) // len(rest)
                for kk, op in enumerate(gq):
                    last = max(last, min(55, pos + (kk + 1) // 2))
                    fl.setdefault(last, []).append(op)
        self.interleave(seg, mf, fl)

    def qphase(self):
        q = Seg("qphase")
        lo, hi = self.o.pflo, self.o.pfhi
        sched = {s: [] for s in range(20)}
        NPF = 48
        p0 = self.o.pf0
        stepof = lambda k: lo + ((k - p0) * (hi - lo)) // (NPF - p0)
        for k in range(p0, NPF):
            sched[stepof(k)].append(k)
        assert stepof(max(15, p0)) < self.o.fragstep < stepof(32)
        for s in range(20):
            self.qstep(q, s, sched[s])
        return q

    def convert(self):
        c = Seg("convert")
        self.stamp(c, 2)
        c(f"s_movk_i32 s{S_KOFF}, 24576\ns_movk_i32 s{S_KOFF2}, 28672\ns_movk_i32 s{S_VOFF}, 24576\ns_movk_i32 s{S_VOFF2}, 28672")
        c(f"v_mov_b32 v{V_U}, s{S_C}\nv_mov_b32 v{V_U+1}, s{S_C}")
        k = 0
        for t in range(7):
            for kk in range(4):
                for rho in range(4):
                    t0 = V_S + (k % 4) * 2
                    k += 1
                    c(f"v_accvgpr_read_b32 v{t0}, a{acc(2*rho, t) + kk}")
                    c(f"v_accvgpr_read_b32 v{t0+1}, a{acc(2*rho+1, t) + kk}")
                    c(f"v_pk_mul_f32 {vr(t0, 2)}, {vr(t0, 2)}, {vr(V_U, 2)}")
                    c(f"v_cvt_pk_bf16_f32 v{V_QF + (t*4+kk)*4 + rho}, v{t0}, v{t0+1}")
        return c

    def wo_piece(self, s0):
        self.put(s0, [("wait", "wo")])
        for tau in range(5):
            for e in range(2):
                s0(f"ds_read_b64_tr_b16 {ar(acc(tau, 6) + e*2, 2)}, v{V_X1} offset:{e*2560 + tau*32}")
        s0(f"v_add_u32 v{V_X1}, 4096, v{V_OST}")
        s0("s_waitcnt lgkmcnt(0)")
        for tau in range(5):
            va, of = (V_OST, tau * 1024) if tau < 4 else (V_X1, 0)
            self.put(s0, [("vm", "wst", f"buffer_store_dwordx4 {ar(acc(tau, 6))}, v{va}, {SRD_WT}, 0 offen offset:{of} sc1")])

    def poll(self, seg, name, load, cmp, sleep):
        seg(f"s_mov_b32 s{S_SPIN}, 0")
        seg(f"L_{name}:")
        seg(load)
        seg("s_waitcnt vmcnt(0)")
        for c in cmp:
            seg(c)
        seg(f"s_cbranch_vccz L_{name}_done")
        seg(f"s_sleep {sleep}\ns_add_u32 s{S_SPIN}, s{S_SPIN}, 1\ns_cmp_lt_u32 s{S_SPIN}, {self.o.spin}\ns_cbranch_scc1 L_{name}")
        seg(f"L_{name}_done:")

    def tile_dma(self, which, blk):
        srd = SRD_K if which == "K" else SRD_V
        o1, o2 = (S_KOFF, S_KOFF2) if which == "K" else (S_VOFF, S_VOFF2)
        mi = (blk & 1) * 4 + (0 if which == "K" else 2)
        out = []
        for h, o in enumerate((o1, o2)):
            out.append(f"s_mov_b32 m0, s{S_M[mi + h]}")
            for i in range(4):
                out.append(("vm", f"{which}{blk}",
                            f"buffer_load_dwordx4 v{V_DMA+i}, {srd}, s{o} offen offset:{i*1024} {self.kvflags} lds"))
            out.append(f"s_add_u32 s{o}, s{o}, 8192")
        return out

    def k_read(self, blk, a, kk):
        return f"ds_read_b128 {ar(A_KF + (a*4+kk)*4)}, v{V_KA+kk} offset:{(blk & 1)*16384 + a*4096}"

    def k_reads(self, blk):
        return [self.k_read(blk, a, kk) for a in range(2) for kk in range(4)]

    def v_read(self, blk, d):
        return [f"ds_read_b64_tr_b16 {vr(V_VF + d*4 + a*2, 2)}, v{V_VA+d} offset:{(blk & 1)*16384 + 8192 + a*4096}" for a in range(2)]

    def softmax_ops(self, t, mode, par):
        S = V_S + (t & 1) * 8
        nm = V_NM + 4 * t
        Ln = V_L + par * 7 + t
        Lo = V_L + (par ^ 1) * 7 + t
        u = V_U
        ops = []
        if mode != "fast":
            ops += [f"v_max3_f32 v{u}, v{S}, v{S+1}, v{S+2}",
                    f"v_max3_f32 v{u}, v{u}, v{S+3}, v{S+4}",
                    f"v_max3_f32 v{u}, v{u}, v{S+5}, v{S+6}",
                    f"v_max_f32 v{u}, v{u}, v{S+7}",
                    f"v_mov_b32 v{u+1}, v{u}",
                    f"v_permlane16_swap_b32 v{u}, v{u+1}",
                    f"v_max_f32 v{u}, v{u}, v{u+1}",
                    f"v_mov_b32 v{u+1}, v{u}",
                    f"v_permlane32_swap_b32 v{u}, v{u+1}",
                    f"v_max_f32 v{u}, v{u}, v{u+1}"]
            if mode == "first":
                ops += [f"v_sub_f32 v{nm+i}, 0, v{u}" for i in range(4)]
                ops += [f"v_mov_b32 v{Lo}, 0"]
            else:
                ops += [f"v_sub_f32 v{u}, 0, v{u}",
                        f"v_min_f32 v{u}, v{u}, v{nm}",
                        f"v_sub_f32 v{u+1}, v{u}, v{nm}",
                        f"v_exp_f32 v{u+1}, v{u+1}"]
                ops += [f"v_mov_b32 v{nm+i}, v{u}" for i in range(4)]
                ops += [f"v_mul_f32 v{Lo}, v{Lo}, v{u+1}"]
                for d in range(8):
                    for r in range(4):
                        a = acc(d, t) + r
                        tt = u + 2 + (r & 1)
                        ops += [f"v_accvgpr_read_b32 v{tt}, a{a}",
                                f"v_mul_f32 v{tt}, v{tt}, v{u+1}",
                                f"v_accvgpr_write_b32 a{a}, v{tt}"]
            ops += [f"v_add_f32 v{S+i}, v{S+i}, v{nm}" for i in range(8)]
        ex = [f"v_exp_f32 v{S+i}, v{S+i}" for i in range(8)]
        cv = [f"v_cvt_pk_bf16_f32 v{V_P + t*4 + r}, v{S+2*r}, v{S+2*r+1}" for r in range(4)]
        a = [f"v_add_f32 v{u+2}, v{S}, v{S+1}",
             f"v_add_f32 v{u+3}, v{S+2}, v{S+3}",
             f"v_add_f32 v{u+4}, v{S+4}, v{S+5}",
             f"v_add_f32 v{Ln}, v{S+6}, v{S+7}",
             f"v_add_f32 v{u+2}, v{u+2}, v{u+3}",
             f"v_add_f32 v{Ln}, v{Ln}, v{u+4}",
             f"v_add_f32 v{u+2}, v{u+2}, v{Lo}",
             f"v_add_f32 v{Ln}, v{Ln}, v{u+2}"]
        first = ops + [ex[0], ex[1], ex[2], a[0], ex[3], ex[4], a[1], ex[5], a[4], ex[6], a[2], ex[7], a[6]]
        second = [cv[0], a[3], cv[1], a[5], cv[2], a[7], cv[3]]
        return first, second

    def softmax_parts(self, t, par):
        S = V_S + (t & 1) * 8
        Ln = V_L + par * 7 + t
        Lo = V_L + (par ^ 1) * 7 + t
        u = V_U
        ex = [f"v_exp_f32 v{S+i}, v{S+i}" for i in range(8)]
        cv = [f"v_cvt_pk_bf16_f32 v{V_P + t*4 + r}, v{S+2*r}, v{S+2*r+1}" for r in range(4)]
        ad = [f"v_add_f32 v{u+2}, v{S}, v{S+1}",
              f"v_add_f32 v{u+3}, v{S+2}, v{S+3}",
              f"v_add_f32 v{u+4}, v{S+4}, v{S+5}",
              f"v_add_f32 v{Ln}, v{S+6}, v{S+7}",
              f"v_add_f32 v{u+2}, v{u+2}, v{u+3}",
              f"v_add_f32 v{Ln}, v{Ln}, v{u+4}",
              f"v_add_f32 v{u+2}, v{u+2}, v{Lo}",
              f"v_add_f32 v{Ln}, v{Ln}, v{u+2}"]
        return ex, ad, cv

    def qk_mfmas(self, t, mode, kreg=None):
        S = V_S + (t & 1) * 8
        out = []
        for a in range(2):
            for kk in range(4):
                if kk == 0:
                    c = vr(V_NM + 4 * t) if mode == "fast" else "0"
                else:
                    c = vr(S + a * 4)
                kf = ar(A_KF + (a * 4 + kk) * 4) if kreg is None else vr(kreg + (a * 4 + kk) * 4)
                out.append(f"{MFMA} {vr(S+a*4)}, {kf}, {vr(V_QF+(t*4+kk)*4)}, {c}")
        return out

    def pv_mfmas(self, t, zero):
        return [f"{MFMA} {ar(acc(d,t))}, {vr(V_VF+d*4)}, {vr(V_P+t*4)}, {'0' if zero else ar(acc(d,t))}" for d in range(8)]

    def superphase(self, seg, j, mode="fast", pv=True, pvzero=False, qk=True, exact=False, slow_label=None):
        par = j & 1
        mf = []
        fl = {}
        pos = {}
        for st in range(8):
            if pv and st >= 1:
                pos[("pv", st - 1)] = len(mf)
                mf += self.pv_mfmas(st - 1, pvzero)
            if qk and st <= 6:
                pos[("qk", st)] = len(mf)
                mf += self.qk_mfmas(st, mode)
        n = len(mf)
        if qk:
            fl[-1] = ["s_waitcnt lgkmcnt(15)" if pv else "s_waitcnt lgkmcnt(0)"]
        if pv:
            p0 = pos[("pv", 0)]
            fl.setdefault(p0 - 1, []).append("s_waitcnt lgkmcnt(8)")
            fl.setdefault(p0 + 3, []).append("s_waitcnt lgkmcnt(0)")
        if qk:
            for t in range(7):
                first, second = self.softmax_ops(t, mode, par)
                if pv:
                    s0 = pos[("pv", t)]
                    s1 = s0 + 16 if t < 6 else n
                else:
                    s0 = pos[("qk", t + 1)] if t < 6 else n - 1
                    s1 = s0 + 8 if t < 6 else n
                if pv and mode == "fast":
                    ex, ad, cv = self.softmax_parts(t, par)
                    if t < 6:
                        plan = {0: [ex[0]], 1: [ex[1]], 2: [ex[2]], 3: [ex[3]], 4: [ex[4]], 5: [ad[0], ad[1]], 6: [ex[5]],
                                8: [ex[6]], 9: [cv[0], ad[4]], 10: [ex[7]], 11: [cv[1], ad[2]], 12: [ad[6], cv[2]],
                                13: [ad[3], cv[3]], 14: [ad[5], ad[7]]}
                        for gp, ops in plan.items():
                            fl.setdefault(s0 + gp, []).extend(ops)
                    else:
                        plan = {0: [ex[0]], 1: [ex[1]], 2: [ex[2]], 3: [ex[3]], 4: [ex[4]], 5: [ex[5]], 6: [ex[6]]}
                        for gp, ops in plan.items():
                            fl.setdefault(s0 + gp, []).extend(ops)
                        tail_second = [ex[7], ad[0], ad[1], ad[2], ad[4], ad[3], ad[6], ad[5], ad[7]]
                        tail_cv = cv
                elif t < 6:
                    lo = s0 + (1 if pv else 0)
                    mid = s0 + (s1 - s0) * 11 // 16 if pv else s0 + (s1 - s0) * 5 // 8
                    spread(fl, first, lo, mid)
                    spread(fl, second, mid, s1)
                else:
                    fl.setdefault(n - 1, []).extend(first)
                    tail_second = second
                    tail_cv = []
        if qk and j >= 1:
            d = self.tile_dma("K", j + 2)
            fl.setdefault(-1, []).append(d[0])
            for gp, ops in enumerate([[d[1]], [d[2]], [d[3]], [d[4], d[6]], [d[5], d[7]], [d[8]], [d[9]], [d[10], d[11]]]):
                fl.setdefault(gp, []).extend(ops)
        if pv and qk:
            d = self.tile_dma("V", j + 1)
            if j == 1:
                d = []
                for h in range(2):
                    d.append(f"s_mov_b32 m0, s{S_WLDS}")
                    d += [("vm", "dummy", f"buffer_load_dwordx4 v{V_DMA+i}, {SRD_V}, s{S_T2} offen offset:{i*1024} lds") for i in range(4)]
                    d.append("s_nop 0")
                fl.setdefault(-1, []).append(f"s_mov_b32 s{S_T2}, 0x40000")
            seq = [[d[0]], [d[1]], [d[2]], [d[3]], [d[4], d[6]], [d[5], d[7]], [d[8]], [d[9]], [d[10], d[11]]]
            gaps = []
            for t in range(5):
                gaps += [pos[("pv", t)] + 7, pos[("pv", t)] + 15]
            for gp, ops in zip(gaps, seq):
                fl.setdefault(gp, []).extend(ops)
        if qk and j < 15:
            q6 = pos[("qk", 6)]
            w = ("wait", f"K{j+1}") if exact else "s_waitcnt vmcnt(24)"
            fl.setdefault(q6 - 1, []).append(w)
            for i in range(8):
                fl.setdefault(q6 + i, []).append(self.k_read(j + 1, i // 4, i % 4))
        tail = []
        if qk:
            tail += tail_second
            if mode == "fast":
                u = V_U + 5
                L = V_L + par * 7
                fl.setdefault(pos[("pv", 5)] + 7 if pv else n - 6, []).extend(
                    [f"v_max3_f32 v{u}, v{L}, v{L+1}, v{L+2}", f"v_max3_f32 v{u}, v{u}, v{L+3}, v{L+4}"])
                tail += [f"v_max3_f32 v{u}, v{u}, v{L+5}, v{L+6}",
                         f"v_cmp_lt_f32 vcc, {f32bits(self.o.thresh):#x}, v{u}"]
            tail += tail_cv
            if j > 0:
                tail.append(("wait", f"V{j}") if exact else "s_waitcnt vmcnt(16)")
            if mode == "fast":
                tail += [f"s_cbranch_vccnz {slow_label}", f"{slow_label}_ret:"]
            if j > 0:
                for d in range(8):
                    tail += self.v_read(j, d)
        if not qk:
            ops = []
            u = V_U
            for t in range(7):
                l = V_L + 7 + t
                ops += [f"v_mov_b32 v{u}, v{l}", "s_nop 0", f"v_permlane16_swap_b32 v{l}, v{u}", f"v_add_f32 v{l}, v{l}, v{u}",
                        f"v_mov_b32 v{u}, v{l}", "s_nop 0", f"v_permlane32_swap_b32 v{l}, v{u}", f"v_add_f32 v{l}, v{l}, v{u}",
                        f"v_rcp_f32 v{V_RL + 2*t}, v{l}", f"v_rcp_f32 v{V_RL + 2*t + 1}, v{l}"]
            spread(fl, ops, 4, n)
        fl.setdefault(n - 1, []).extend(tail)
        self.interleave(seg, mf, fl)

    def slowpath(self):
        s = Seg("slow")
        def swap():
            for t in range(7):
                s(f"v_swap_b32 v{V_L+t}, v{V_L+7+t}")
        s("L_slowP:\ns_nop 1")
        s(f"s_mov_b32 s{S_RET}, 2\ns_movk_i32 s{S_T}, 8192\ns_branch L_slow_body")
        s("L_slowE:\ns_nop 1")
        swap()
        s(f"s_mov_b32 s{S_RET}, 0\ns_lshl_b32 s{S_T}, s{S_CNT}, 13\ns_branch L_slow_body")
        s("L_slowO:\ns_nop 1")
        s(f"s_mov_b32 s{S_RET}, 1\ns_lshl_b32 s{S_T}, s{S_CNT}, 13\ns_add_u32 s{S_T}, s{S_T}, 8192")
        s("L_slow_body:")
        s(f"v_and_b32 v{V_U}, 15, v{V_LANE}\nv_lshrrev_b32 v{V_U+1}, 4, v{V_LANE}")
        s(f"v_lshlrev_b32 v{V_U}, 8, v{V_U}\nv_lshl_add_u32 v{V_U}, v{V_U+1}, 6, v{V_U}")
        s(f"s_add_u32 s{S_T2}, s{S_T}, 4096\ns_nop 7")
        for a in range(2):
            for kk in range(4):
                s(f"buffer_load_dwordx4 {vr(V_VF + (a*4+kk)*4)}, v{V_U}, {SRD_K}, s{S_T if a == 0 else S_T2} offen offset:{kk*16}")
        s("s_waitcnt vmcnt(0)")
        mf = []
        fl = {}
        for t in range(7):
            mf += self.qk_mfmas(t, "slow", kreg=V_VF)
            first, second = self.softmax_ops(t, "slow", 1)
            if t < 6:
                spread(fl, first + second, (t + 1) * 8, (t + 2) * 8)
            else:
                fl.setdefault(55, []).extend(first + second)
        self.interleave(s, mf, fl)
        s("s_nop 3")
        s(f"s_cmp_eq_u32 s{S_RET}, 1\ns_cbranch_scc1 L_slowO_ret")
        s(f"s_cmp_eq_u32 s{S_RET}, 2\ns_cbranch_scc1 L_slowP_ret")
        swap()
        s("s_nop 1\ns_branch L_slowE_ret")
        return s

    def oacc(self, i):
        return ar(i * 4) if i < 64 else vr(228 + (i - 64) * 4)

    def tail(self):
        e = Seg("tail")
        self.vq.q = []
        u = V_U
        LF = V_L + 7
        PT = 17920
        pool = [vr(136 + 4 * i) for i in range(8)] + [vr(184 + 4 * i) for i in range(11)]
        late_pool = [vr(168 + 4 * i) for i in range(4)]
        apool = []
        loc = {}
        for uu in range(4):
            for t in range(7):
                loc[("B", "own", uu, t)] = vr(V_QF + (uu * 7 + t) * 4)
        seq = [(0, st) for st in range(4)] + [(1, st) for st in range(4)] + \
              [(0, st) for st in range(4, 16)] + [(1, st) for st in range(4, 16)]
        work = []
        for k in range(32):
            if k in (16, 28):
                for ia in range(5):
                    for kk in range(k, k + 4):
                        work += [(kk, ia, t) for t in range(7)]
            elif k in (17, 18, 19, 29, 30, 31):
                continue
            else:
                work += [(k, ia, t) for ia in range(5) for t in range(7)]

        def bkey(k, t):
            ps, st = seq[k]
            return ("B", "own", st, t) if st < 4 else ("B", ps, st, t)
        lastA, lastB, firstA, firstB = {}, {}, {}, {}
        for n, (k, ia, t) in enumerate(work):
            lastA[(k, ia)] = n
            lastB[bkey(k, t)] = n
            firstA.setdefault((k, ia), n)
            firstB.setdefault(bkey(k, t), n)
        todoA = sorted(firstA, key=firstA.get)
        todoB = [x for x in sorted(firstB, key=firstB.get) if x[1] != "own"]
        state = {"covered": -1, "bar": False, "ds": [], "head": None, "nA": 0}

        def a_load():
            if not todoA or not (pool or apool) or len(self.vq.q) - 1 - state["covered"] >= self.o.maxq:
                return False
            k, i = todoA.pop(0)
            ps, st = seq[k]
            reg = apool.pop(0) if apool else pool.pop(0)
            loc[("A", k, i)] = reg
            state["nA"] += 1
            if state["head"] != (ps, st // 4):
                state["head"] = (ps, st // 4)
                e(f"s_add_u32 s{S_Q}, s{S_WAVE}, {st // 4}\ns_and_b32 s{S_Q}, s{S_Q}, 3\ns_mul_i32 s{S_DW[0]}, s{S_Q}, {4*5120}")
                if ps:
                    e(f"s_add_u32 s{S_DW[0]}, s{S_DW[0]}, {128*5120}")
                for c in range(1, 4):
                    e(f"s_add_u32 s{S_DW[c]}, s{S_DW[0]}, {c*5120}")
            va, of = (V_OST, i * 1024) if i < 4 else (V_X1, 0)
            self.put(e, [("vm", f"A{k}_{i}", f"buffer_load_dwordx4 {reg}, v{va}, {SRD_WT}, s{S_DW[st % 4]} offen offset:{of} sc1")])
            return True

        def b_load(limit):
            if not todoB or not pool or not state["bar"] or firstB[todoB[0]] > limit or len(state["ds"]) >= 14:
                return False
            key = todoB.pop(0)
            _, ps, st, t = key
            reg = pool.pop(0)
            loc[key] = reg
            e(f"ds_read_b128 {reg}, v{V_DMA + st // 4} offset:{((st % 4)*7 + t)*1024}")
            state["ds"].append(key)
            return True

        def need_vm(tag):
            pos = max(n for n, x in enumerate(self.vq.q) if x == tag)
            if pos > state["covered"]:
                e(f"s_waitcnt vmcnt({min(63, len(self.vq.q) - 1 - pos)})")
                state["covered"] = pos

        def need_b(key):
            if key in state["ds"]:
                n = state["ds"].index(key)
                e(f"s_waitcnt lgkmcnt({len(state['ds']) - 1 - n})")
                del state["ds"][:n + 1]

        self.stamp(e, 4)
        e("s_waitcnt vmcnt(0)")
        e(f"v_and_b32 v{u+2}, 0x01010101, v{u+2}\nv_cmp_ne_u32 vcc, 0x01010101, v{u+2}")
        e("s_cbranch_vccz L_pollw_done")
        self.poll(e, "pollw", f"buffer_load_dword v{u+2}, v{u+3}, {SRD_AUX}, 0 offen sc1",
                  [f"v_and_b32 v{u+2}, 0x01010101, v{u+2}", f"v_cmp_ne_u32 vcc, 0x01010101, v{u+2}"], 8)
        e(f"s_lshl_b32 s{S_T}, s{S_WAVE}, 8\ns_lshl_b32 s{S_T2}, s{S_J}, 4\ns_add_u32 s{S_T}, s{S_T}, s{S_T2}\ns_mul_i32 s{S_T}, s{S_T}, 5120\ns_add_u32 s{S_T}, s{S_T}, {WS_WT}")
        self.srd(e, 64, P_WS, f"s{S_T}", 0, 0 if "A" in self.o.qab else 144 * 5120)
        e(f"v_add_u32 v{V_X1}, 4096, v{V_OST}")
        for _ in range(len(pool)):
            a_load()
        for i in range(4):
            e(f"s_add_u32 s{S_T}, s{S_WAVE}, {i}\ns_and_b32 s{S_T}, s{S_T}, 3\ns_lshl_b32 s{S_T}, s{S_T}, 15")
            e(f"v_add_u32 v{V_DMA+i}, s{S_T}, v{V_OST}")
        k = 0
        for uu in range(4):
            for t in range(7):
                dst = V_QF + (uu * 7 + t) * 4
                for half in range(2):
                    for pr in range(2):
                        t0 = V_S + (k % 4) * 2
                        k += 1
                        a = acc(2 * uu + half, t) + 2 * pr
                        e(f"v_accvgpr_read_b32 v{t0}, a{a}")
                        e(f"v_accvgpr_read_b32 v{t0+1}, a{a+1}")
                        e(f"v_pk_mul_f32 {vr(t0, 2)}, {vr(t0, 2)}, {vr(V_RL + 2*t, 2)}")
                        e(f"v_cvt_pk_bf16_f32 v{dst + half*2 + pr}, v{t0}, v{t0+1}")
                e(f"ds_write_b128 v{V_DMA}, {vr(dst)} offset:{(uu*7 + t)*1024}")
        pool.extend(late_pool)
        e(f"s_lshl_b32 s{S_T}, s{S_B}, 3\ns_lshl_b32 s{S_T2}, s{S_WAVE}, 1\ns_add_u32 s{S_T}, s{S_T}, s{S_T2}\ns_lshl_b32 s{S_T}, s{S_T}, 3\ns_add_u32 s{S_T}, s{S_T}, s{S_J}")
        e(f"s_mul_i32 s{S_T}, s{S_T}, {PT}")
        self.srd(e, 20, P_WS, f"s{S_T}", 0, 0 if "P" in self.o.qab else 9 * PT)
        e(f"s_lshl_b32 s{S_T}, s{S_B}, 8\ns_lshl_b32 s{S_T3}, s{S_WAVE}, 6\ns_add_u32 s{S_T}, s{S_T}, s{S_T3}\ns_lshl_b32 s{S_T3}, s{S_J}, 2\ns_add_u32 s{S_T}, s{S_T}, s{S_T3}")
        e(f"v_mov_b32 v{u+5}, s{S_T}\nv_lshlrev_b32 v{u+4}, 3, v{V_LANE}")
        self.stamp(e, 5)

        CV = [6, 10, 14]

        held = []

        def cvt_ops(ps, pair):
            hold = (ps == 0 and self.o.burst)
            if hold:
                gr = pool.pop()
                g = int(gr[2:gr.index(":")])
            else:
                g = CV[pair % 3]
            ops = []
            for h in range(2):
                ti = 2 * pair + h
                if ti >= 35:
                    break
                src = self.oacc(ps * 35 + ti)
                base = int(src[2:src.index(":")])
                for pr in range(2):
                    if src[0] == "a":
                        ta = u + 2 * pr
                        ops += [f"v_accvgpr_read_b32 v{ta}, a{base + 2*pr}", f"v_accvgpr_read_b32 v{ta+1}, a{base + 2*pr + 1}",
                                f"v_cvt_pk_bf16_f32 v{g + 2*h + pr}, v{ta}, v{ta+1}"]
                    else:
                        ops.append(f"v_cvt_pk_bf16_f32 v{g + 2*h + pr}, v{base + 2*pr}, v{base + 2*pr + 1}")
                if ps == 0:
                    ops.append(("free", src))
            off = ps * 8 * PT + pair * 1024
            st = [f"s_mov_b32 s{S_T3}, {off}"]
            if 2 * pair + 1 < 35:
                st.append(("vm", f"P{ps}", f"buffer_store_dwordx4 {vr(g)}, v{V_OST}, {SRD_O}, s{S_T3} offen sc1"))
            else:
                st.append(("vm", f"P{ps}", f"buffer_store_dwordx2 {vr(g, 2)}, v{u+4}, {SRD_O}, s{S_T3} offen sc1"))
            if hold:
                held.extend(st + [("freev", gr)])
            else:
                ops += st
            return ops

        def flag(ps):
            e(f"v_mov_b32 v{u}, 1")
            self.put(e, [("vm", "fl", f"buffer_store_dword v{u}, v{u+5}, {SRD_FL}, 0 offen offset:{32*ps} sc1")])

        S_JC, S_PB, S_MK = S_DX[0], S_DX[1], S_DX[2]
        rreg = {}

        def red_setup():
            e(f"s_and_b32 s{S_JC}, s{S_J}, 6\ns_and_b32 s{S_PB}, s{S_J}, 1\ns_mul_i32 s{S_PB}, s{S_PB}, 9\ns_add_u32 s{S_PB}, s{S_PB}, s{S_WAVE}")
            e(f"s_lshl_b32 s{S_T}, s{S_B}, 3\ns_add_u32 s{S_T}, s{S_T}, s{S_JC}\ns_lshl_b32 s{S_T2}, s{S_T}, 5\ns_mul_i32 s{S_T}, s{S_T}, {8*PT}")
            self.srd(e, 64, P_WS, f"s{S_T}", 0, 16 * PT)
            e(f"s_mul_i32 s{S_Q}, s{S_JC}, 160\ns_mul_i32 s{S_T}, s{S_B}, 143360\ns_add_u32 s{S_T}, s{S_T}, s{S_Q}")
            e(f"s_add_u32 s72, s{P_OUT}, s{S_T}\ns_addc_u32 s73, s{P_OUT+1}, 0\ns_sub_u32 s74, 143360, s{S_Q}\ns_mov_b32 s75, 0x20000")
            e(f"v_and_b32 v2, 15, v{V_LANE}\nv_lshrrev_b32 v3, 4, v{V_LANE}\nv_mul_u32_u24 v2, 1280, v2\nv_lshl_add_u32 v2, v3, 3, v2")
            e(f"v_and_b32 v3, 7, v{V_LANE}\nv_lshlrev_b32 v3, 2, v3")
            e(f"s_lshl_b32 s{S_T}, s{S_PB}, 10\nv_add_u32 v4, s{S_T}, v{V_OST}")
            e(f"s_bitcmp1_b32 s{S_J}, 0\ns_cselect_b32 s{S_Q}, 3, 4\nv_lshlrev_b32 v5, s{S_Q}, v{V_LANE}\nv_add_u32 v5, s{S_T}, v5")
            e(f"s_mov_b32 s{S_MK}, 0xffff0000")

        def red_loads(ps, regs):
            for k in range(3):
                for src in range(8):
                    rreg[(k, src)] = regs[k * 8 + src]
                    e(f"s_mov_b32 s{S_Q}, {ps*8*PT + src*PT + k*4096}")
                    self.put(e, [("vm", f"r{ps}{k}", f"buffer_load_dwordx4 {regs[k*8 + src]}, v{4 if k < 2 else 5}, {SRD_WT}, s{S_Q} offen sc1")])

        def out_store(ps, k, lab):
            O = 212 + k * 4
            for h in range(2):
                e(f"s_lshl_b32 s{S_T}, s{S_PB}, 1\ns_add_u32 s{S_T}, s{S_T}, {8*k + h}")
                e(f"s_mul_i32 s{S_Q}, s{S_T}, 37\ns_lshr_b32 s{S_Q}, s{S_Q}, 8")
                e(f"s_mul_i32 s{S_T3}, s{S_Q}, 7\ns_sub_u32 s{S_T3}, s{S_T}, s{S_T3}")
                e(f"s_mul_i32 s{S_T3}, s{S_T3}, 20480\ns_lshl_b32 s{S_Q}, s{S_Q}, 5\ns_add_u32 s{S_T3}, s{S_T3}, s{S_Q}")
                if k == 2 and h == 1:
                    e(f"s_bitcmp1_b32 s{S_J}, 0\ns_cbranch_scc1 {lab}")
                e(f"buffer_store_dwordx2 {vr(O + 2*h, 2)}, v2, {SRD_OUT}, s{S_T3} offen offset:{160*ps}")
                self.vq.issue("st")

        def red_out(ps):
            for k in range(3):
                if k == 2:
                    e(f"s_cmp_lg_u32 s{S_WAVE}, 0\ns_cbranch_scc1 L_out{ps}_done")
                out_store(ps, k, f"L_out{ps}_done")
            e(f"L_out{ps}_done:")

        def red_sums(ps, stores):
            for k in range(3):
                if k == 2:
                    e(f"s_cmp_lg_u32 s{S_WAVE}, 0\ns_cbranch_scc1 L_red{ps}_done")
                need_vm(f"r{ps}{k}")
                A = 196
                for src in range(8):
                    rr = rreg[(k, src)]
                    r = int(rr[2:rr.index(":")])
                    for i in range(4):
                        d = A + 2 * i if src == 0 else A + 8 + 2 * (i & 1)
                        if rr[0] == "a":
                            e(f"v_accvgpr_read_b32 v{A+12+(i&1)}, a{r+i}")
                            x = A + 12 + (i & 1)
                        else:
                            x = r + i
                        e(f"v_lshlrev_b32 v{d}, 16, v{x}")
                        e(f"v_and_b32 v{d+1}, s{S_MK}, v{x}")
                        if src:
                            e(f"v_pk_add_f32 {vr(A+2*i, 2)}, {vr(A+2*i, 2)}, {vr(d, 2)}")
                O = 212 + k * 4
                for i in range(4):
                    e(f"v_cvt_pk_bf16_f32 v{O+i}, v{A+2*i}, v{A+2*i+1}")
                if stores:
                    out_store(ps, k, f"L_red{ps}_done")
            e(f"L_red{ps}_done:")

        done = {}
        for n, (k, ia, t) in enumerate(work):
            done[(seq[k][0], ia * 7 + t)] = n
        pending = [(done[(ps, min(34, 2 * pr + 1))] + 6, ps, pr) for ps in range(2) for pr in range(18)]
        if self.o.burst:
            pending = [(max(x[0], 700) if x[1] == 0 else x[0], x[1], x[2]) for x in pending]
        pending.sort()
        side = []
        flag0_at = None
        for n, (k, ia, t) in enumerate(work):
            ps, st = seq[k]
            if n == self.o.barstep * 35:
                e("s_waitcnt lgkmcnt(0)\ns_barrier")
                state["bar"] = True
                self.stamp(e, 6)
            while pending and pending[0][0] <= n and len(side) < 20 and (len(pool) > 8 or pending[0][1] == 1 or not self.o.burst):
                _, p2, pr = pending.pop(0)
                side += cvt_ops(p2, pr)
                if p2 == 0 and pr == 17 and not self.o.burst:
                    side.append("END0")
            if self.o.burst and n == self.o.burst:
                assert len(held) == 54 and not side
                side += held + ["END0"]
            while ("A", k, ia) not in loc:
                assert a_load(), "pool exhausted (A)"
            need_vm(f"A{k}_{ia}")
            bk = bkey(k, t)
            while bk not in loc:
                assert b_load(n), "pool exhausted (B)"
            need_b(bk)
            d = self.oacc(ps * 35 + ia * 7 + t)
            c = "0" if st == 0 else d
            e(f"{MFMA} {d}, {loc[('A', k, ia)]}, {loc[bk]}, {c}")
            used = 0
            if b_load(n + 30):
                used += 1
            elif (apool or (state["nA"] < self.o.maxA and (len(pool) > 7 or not todoB or not state["bar"]))) and a_load():
                used += 1
            while side and used < 2:
                x = side.pop(0)
                if x == "END0":
                    flag0_at = n + self.o.flagdelay
                elif x[0] == "free":
                    apool.append(x[1])
                elif x[0] == "freev":
                    pool.append(x[1])
                else:
                    self.put(e, [x])
                    used += 1
            if flag0_at is not None and n == flag0_at:
                assert not side
                need_vm("P0")
                flag(0)
            if lastB[bk] == n:
                pool.append(loc[bk])
            if lastA[(k, ia)] == n:
                r = loc[("A", k, ia)]
                (apool if r[0] == "a" else pool).append(r)
                state["nA"] -= 1
            if n == len(work) - self.o.early:
                assert not todoA and not todoB
                red_setup()
                self.poll(e, "pollp0", f"buffer_load_dword v{V_X1}, v3, {SRD_FL}, s{S_T2} offen sc1",
                          [f"v_cmp_ne_u32 vcc, 1, v{V_X1}"], 1)
                state["covered"] = len(self.vq.q) - 1
                self.stamp(e, 11)
                assert len(apool) >= 24, len(apool)
                red_loads(0, [apool.pop(0) for _ in range(24)])
        self.stamp(e, 7)
        for _, p2, pr in pending:
            side += cvt_ops(p2, pr)
        self.put(e, [x for x in side if x[0] != "free"])
        self.stamp(e, 10)
        if self.o.early:
            red_sums(0, stores=False)
            e("s_waitcnt vmcnt(0)")
            flag(1)
            red_out(0)
        else:
            red_setup()
            self.poll(e, "pollp0", f"buffer_load_dword v{V_X1}, v3, {SRD_FL}, s{S_T2} offen sc1",
                      [f"v_mov_b32 v{u}, 1\nbuffer_store_dword v{u}, v{u+5}, {SRD_FL}, 0 offen offset:32 sc1",
                       f"v_cmp_ne_u32 vcc, 1, v{V_X1}"], 1)
            self.stamp(e, 11)
            self.vq.q = []
            state["covered"] = -1
            red_loads(0, [vr(24 + 4 * i) for i in range(24)])
            red_sums(0, stores=True)
        self.stamp(e, 12)
        self.poll(e, "pollp1", f"buffer_load_dword v{V_X1}, v3, {SRD_FL}, s{S_T2} offen offset:32 sc1",
                  [f"v_cmp_ne_u32 vcc, 1, v{V_X1}"], 1)
        self.stamp(e, 9)
        self.vq.q = []
        state["covered"] = -1
        red_loads(1, [vr(24 + 4 * i) for i in range(24)])
        red_sums(1, stores=True)
        self.stamp(e, 14)
        if self.o.stamps:
            e("s_waitcnt vmcnt(0) lgkmcnt(0)")
            self.stamp(e, 8)
            e(f"s_lshl_b32 s{S_T}, s2, 2\ns_add_u32 s{S_T}, s{S_T}, s{S_WAVE}\ns_lshl_b32 s{S_T}, s{S_T}, 7\ns_add_u32 s{S_T}, s{S_T}, {WS_ST}")
            self.srd(e, 76, P_WS, f"s{S_T}", 0, 128)
            e(f"v_lshlrev_b32 v2, 2, v{V_LANE}")
            e(f"buffer_store_dword v{V_STAMP}, v2, {SRD_AUX}, 0 offen")
        e("L_end:\ns_endpgm")
        return e

    def build(self):
        pro = self.prologue()
        q = self.qphase()
        if self.o.qdrop:
            q.ins = [i for i in q.ins if not any(i.text.startswith(d) for d in self.o.qdrop.split(","))]
        conv = self.convert()
        u = V_U
        s0 = Seg("SP0")
        self.stamp(s0, 3)
        self.superphase(s0, 0, mode="first", pv=False, exact=True)
        self.wo_piece(s0)
        s1 = Seg("SP1")
        self.superphase(s1, 1, pvzero=True, exact=True, slow_label="L_slowP")
        self.srd(s1, 76, P_DBG, 0, 0, 256)
        s1(f"v_mov_b32 v{u}, 1\nv_mov_b32 v{V_X1}, s2")
        self.put(s1, [("wait", "wst")])
        s1("s_barrier")
        s1(f"s_cmp_lg_u32 s{S_WAVE}, 0\ns_cbranch_scc1 L_nopub")
        s1(f"buffer_store_byte v{u}, v{V_X1}, {SRD_AUX}, 0 offen sc1")
        s1("L_nopub:")
        s1(f"s_mov_b32 s{S_CNT}, 2")
        le = Seg("SPe")
        le("L_loop:")
        self.superphase(le, 2, slow_label="L_slowE")
        lo = Seg("SPo")
        self.superphase(lo, 3, slow_label="L_slowO")
        lo(f"s_add_u32 s{S_CNT}, s{S_CNT}, 2\ns_cmp_lt_u32 s{S_CNT}, 16\ns_cbranch_scc1 L_loop")
        if self.o.lim:
            from asmlib import Ins
            for seg in (le, lo):
                new = []
                for i in seg.ins:
                    if i.kind == "vmem" and i.lds:
                        new.append(Ins(f"s_waitcnt vmcnt({self.o.lim})"))
                    new.append(i)
                seg.ins = new
        tl = Seg("SPtail")
        tl(f"v_lshlrev_b32 v{u+3}, 2, v{V_LANE}")
        tl(f"buffer_load_dword v{u+2}, v{u+3}, {SRD_AUX}, 0 offen sc1")
        tl("s_waitcnt lgkmcnt(0)")
        self.superphase(tl, 16, qk=False)
        fin = self.tail()
        slow = self.slowpath()
        n = fix_path([pro, q, conv, s0, s1, le, lo, tl, fin], verbose=self.o.verbose)
        n += fix_path([slow], verbose=self.o.verbose)
        for path in ([lo, le, lo, le], [lo, tl]):
            fix_path(path, insert=False)
        print(f"inserted {n} wait states", file=sys.stderr)
        return [pro, q, conv, s0, s1, le, lo, tl, fin, slow]


HEADER = """; Kernarg layout for this problem (64 bytes, ptrs only, base s[0:1]):
; One launch, one workgroup per CU, one wave per (batch, head): Q projection, flash attention over an
"""


def main():
    ap = argparse.ArgumentParser()
    ap.add_argument("-o", default="standalone__gqa_block_cached__near_ridge.s")
    ap.add_argument("--kvflags", default="nt")
    ap.add_argument("--thresh", type=float, default=1048576.0)
    ap.add_argument("--stamps", type=int, default=0)
    ap.add_argument("--verbose", action="store_true")
    ap.add_argument("--rotb", type=int, default=1)
    ap.add_argument("--wi", type=int, default=1)
    ap.add_argument("--barstep", type=int, default=6)
    ap.add_argument("--l2pf", default="")
    ap.add_argument("--l2flags", default="")
    ap.add_argument("--burst", type=int, default=0)
    ap.add_argument("--early", type=int, default=0)
    ap.add_argument("--nb", type=int, default=4)
    ap.add_argument("--lim", type=int, default=0)
    ap.add_argument("--pfsteps", default="")
    ap.add_argument("--pfpos", type=int, default=55)
    ap.add_argument("--codepf", type=int, default=57344)
    ap.add_argument("--maxA", type=int, default=16)
    ap.add_argument("--flagdelay", type=int, default=140)
    ap.add_argument("--oi", type=int, default=1)
    ap.add_argument("--oj", type=int, default=1)
    ap.add_argument("--rb", type=int, default=0)
    ap.add_argument("--preA", type=int, default=8)
    ap.add_argument("--maxq", type=int, default=40)
    ap.add_argument("--pollstep", type=int, default=2)
    ap.add_argument("--qab", default="")
    ap.add_argument("--qdrop", default="")
    ap.add_argument("--wj", type=int, default=1)
    ap.add_argument("--wostep", type=int, default=3)
    ap.add_argument("--nokv", type=int, default=0)
    ap.add_argument("--pflo", type=int, default=0)
    ap.add_argument("--pfhi", type=int, default=19)
    ap.add_argument("--fragstep", type=int, default=10)
    ap.add_argument("--pf0", type=int, default=0)
    ap.add_argument("--vspan", type=int, default=60)
    ap.add_argument("--spin", type=int, default=200000)
    o = ap.parse_args()
    segs = Gen(o).build()
    out = [HEADER.rstrip("\n")]
    out.append("; @launch grid=(256,1,1) block=(256,1,1) lds=163840")
    out.append('.amdgcn_target "amdgcn-amd-amdhsa--gfx950"\n.text')
    out.append(f".globl {KN}\n.p2align 8\n.type {KN},@function\n{KN}:")
    for s in segs:
        out.append(f"; ---- {s.name}")
        out.append(s.text())
    out.append('.section .rodata,"a"\n.p2align 6')
    out.append(f""".amdhsa_kernel {KN}
  .amdhsa_next_free_vgpr 512
  .amdhsa_next_free_sgpr 102
  .amdhsa_accum_offset 256
  .amdhsa_group_segment_fixed_size 0
  .amdhsa_kernarg_size 64
  .amdhsa_user_sgpr_count 2
  .amdhsa_user_sgpr_kernarg_segment_ptr 1
  .amdhsa_system_sgpr_workgroup_id_x 1
.end_amdhsa_kernel
""")
    open(o.o, "w").write("\n".join(out))


main()
```

```python
import sys, re, struct, argparse
from asmlib import Seg, fix_path, VmQueue

KN = "standalone__gqa_block_cached__near_ridge_kernel"
MFMA = "v_mfma_f32_16x16x32_bf16"


def f32bits(x):
    return struct.unpack("<I", struct.pack("<f", x))[0]


CSCALE = 1.4426950408889634 * (128 ** -0.5)

S_WAVE = 3
SRD_X, SRD_WQ, SRD_K, SRD_V, SRD_O = "s[4:7]", "s[8:11]", "s[12:15]", "s[16:19]", "s[20:23]"
S_M = [24, 25, 26, 27, 28, 29, 30, 31]
S_T = 32
S_C = 33
S_SEL0, S_SEL1 = 34, 35
S_WQOFF = 36
S_XOFF = 37
S_XLDS = 38
S_T2, S_T3 = 39, 40
S_CNT = 41
S_KOFF, S_KOFF2, S_VOFF, S_VOFF2 = 42, 43, 44, 45
S_OOFF, S_WOFF, S_SPIN, S_CALL = 46, 47, 48, 49
S_RET = 50
S_ROLE = 51
S_G = 34
S_P = 35
S_HB = 36
S_Q = 37
S_WOFF2 = 38
S_DW = [52, 53, 54, 55]
S_DX = [56, 57, 58, 59]
S_WQT, S_XT = 60, 61
S_OFF = 62
S_WLDS = 63
SRD_WT = "s[64:67]"
SRD_FL = "s[68:71]"
SRD_OUT = "s[72:75]"
SRD_AUX = "s[76:79]"
P_X, P_K, P_V, P_WQ, P_WO, P_OUT, P_DBG, P_WS = 80, 82, 84, 86, 88, 90, 92, 94
S_B, S_J, S_H, S_PAIR = 96, 97, 98, 99

V_LANE = 0
V_X1 = 1
V_DMA = 2
V_KA = 6
V_VA = 10
V_U = 18
V_QF = 24
V_VF = 136
V_S = 168
V_P = 184
V_NM = 212
V_L = 240
V_RL = 228
A_KF = 224
V_STAMP = 255
V_RAW = 24
V_XF = 168
V_AF = 224
V_WQ8 = 232
V_XS = 240
V_XRD = 242
V_WT = 244
V_OST = 254
V_L2 = 250
SLOT = 8192
XBUF = 16 * SLOT
NRAW = 3

WS_WT = 32 << 20
WS_FL = 48 << 20

WS_ST = 64 << 20


def vr(b, n=4):
    return f"v[{b}:{b+n-1}]"


def ar(b, n=4):
    return f"a[{b}:{b+n-1}]"


def acc(j, t):
    return (j * 7 + t) * 4


def spread(fillers, ops, lo, hi):
    n = hi - lo
    for k, op in enumerate(ops):
        idx = lo + (k * n) // len(ops)
        fillers.setdefault(idx, []).append(op)


class Gen:
    def __init__(self, opt):
        self.o = opt
        self.vq = VmQueue()
        self.kvflags = opt.kvflags
        self.nlabel = 0

    def label(self, base):
        self.nlabel += 1
        return f"L_{base}{self.nlabel}"

    def stamp(self, seg, i):
        if self.o.stamps:
            seg(f"s_mem{'' if self.o.stamps == 2 else 'real'}time s[100:101]")
            seg("s_waitcnt lgkmcnt(0)")
            seg(f"v_writelane_b32 v{V_STAMP}, s100, {2*i}")
            seg(f"v_writelane_b32 v{V_STAMP}, s101, {2*i+1}")

    def emit_list(self, lst):
        out = []
        for x in lst:
            if isinstance(x, tuple):
                if x[0] == "vm":
                    self.vq.issue(x[1])
                    out.append(x[2])
                elif x[0] == "wait":
                    out.append(f"s_waitcnt vmcnt({min(63, self.vq.wait_for(x[1]))})")
            else:
                out.append(x)
        return out

    def put(self, seg, lst):
        for s in self.emit_list(lst):
            seg(s)

    def interleave(self, seg, mfmas, fillers):
        self.put(seg, fillers.get(-1, []))
        for i, m in enumerate(mfmas):
            seg(m)
            self.put(seg, fillers.get(i, []))

    @staticmethod
    def srd(p, d, base, off_lo, off_hi, nrec):
        p(f"s_add_u32 s{d}, s{base}, {off_lo}\ns_addc_u32 s{d+1}, s{base+1}, {off_hi}")
        p(f"s_mov_b32 s{d+2}, {nrec}\ns_mov_b32 s{d+3}, 0x20000")

    def prologue(self):
        p = Seg("prologue")
        p("s_cmp_ge_u32 s2, 256\ns_cbranch_scc1 L_end")
        if self.o.stamps:
            p("s_memrealtime s[76:77]")
        p(f"s_load_dwordx16 s[{P_X}:{P_X+15}], s[0:1], 0")
        n, g, t0, t1 = V_U, V_U + 1, V_U + 2, V_U + 3
        p(f"v_lshrrev_b32 v{t0}, 6, v0")
        p(f"v_mov_b32 v{V_X1}, v0")
        p(f"v_and_b32 v{V_LANE}, 63, v0")
        p(f"v_readfirstlane_b32 s{S_WAVE}, v{t0}")
        if self.o.stamps:
            p(f"v_mov_b32 v{V_STAMP}, 0")
        if self.o.codepf:
            p("s_getpc_b64 s[72:73]")
            p("s_and_b32 s72, s72, 0xffffff00")
            p(f"s_mov_b32 s74, {self.o.codepf}\ns_mov_b32 s75, 0x20000")
            p(f"s_lshr_b32 s{S_T}, s2, 3\ns_lshl_b32 s{S_T}, s{S_T}, 12")
            p(f"v_lshlrev_b32 v{t1}, 4, v{V_X1}")
            p(f"buffer_load_dwordx4 {ar(A_KF)}, v{t1}, {SRD_OUT}, s{S_T} offen")
        nb = self.o.nb
        lnb = nb.bit_length() - 1
        nhg = 32 // nb
        lhg = nhg.bit_length() - 1
        xh = 8 // nhg
        lxh = xh.bit_length() - 1
        p(f"s_and_b32 s{S_T2}, s2, 7\ns_lshr_b32 s{S_T3}, s2, 3")
        p(f"s_lshr_b32 s{S_B}, s{S_T2}, {lxh}\ns_lshl_b32 s{S_B}, s{S_B}, {lnb}\ns_lshr_b32 s{S_T}, s{S_T3}, {lhg}\ns_add_u32 s{S_B}, s{S_B}, s{S_T}")
        p(f"s_and_b32 s{S_J}, s{S_T2}, {xh-1}\ns_lshl_b32 s{S_J}, s{S_J}, {lhg}\ns_and_b32 s{S_T}, s{S_T3}, {nhg-1}\ns_add_u32 s{S_J}, s{S_J}, s{S_T}")
        p(f"s_lshl_b32 s{S_H}, s{S_J}, 2\ns_add_u32 s{S_H}, s{S_H}, s{S_WAVE}")
        p(f"s_lshl_b32 s{S_PAIR}, s{S_B}, 5\ns_add_u32 s{S_PAIR}, s{S_PAIR}, s{S_H}")
        p(f"v_and_b32 v{n}, 15, v{V_LANE}")
        p(f"v_lshrrev_b32 v{g}, 4, v{V_LANE}")
        p(f"v_lshlrev_b32 v{t0}, 16, v{g}")
        p(f"v_lshl_add_u32 v{V_WQ8}, v{n}, 4, v{t0}")
        for i in range(1, 8):
            p(f"v_add_u32 v{V_WQ8+i}, {i*8192}, v{V_WQ8}")
        p(f"v_lshrrev_b32 v{t0}, 4, v{V_LANE}")
        p(f"v_and_b32 v{t1}, 7, v{V_LANE}")
        p(f"v_xor_b32 v{t0}, v{t0}, v{t1}")
        p(f"v_lshlrev_b32 v{t0}, 4, v{t0}")
        p(f"v_lshrrev_b32 v{t1}, 3, v{V_LANE}")
        p(f"s_lshl_b32 s{S_T}, s{S_WAVE}, 5")
        p(f"v_add_u32 v{t1}, s{S_T}, v{t1}")
        p(f"v_mul_u32_u24 v{t1}, 1280, v{t1}")
        p(f"v_add_u32 v{V_XS}, v{t0}, v{t1}")
        p(f"v_xor_b32 v{V_XS+1}, 64, v{V_XS}")
        p(f"v_add_u32 v{V_XS+1}, 10240, v{V_XS+1}")
        p(f"s_lshl_b32 s{S_XLDS}, s{S_WAVE}, 12\ns_add_u32 s{S_XLDS}, s{S_XLDS}, {XBUF}")
        p(f"s_and_b32 s{S_T}, s2, 7\ns_mul_i32 s{S_T}, s{S_T}, {self.o.rotb}")
        p(f"s_mul_i32 s{S_T3}, s{S_T}, 13108\ns_lshr_b32 s{S_T3}, s{S_T3}, 16\ns_mul_i32 s{S_T3}, s{S_T3}, 5\ns_sub_u32 s{S_T}, s{S_T}, s{S_T3}")
        p(f"s_lshl_b32 s{S_WQOFF}, s{S_T}, 20\ns_lshl_b32 s{S_XOFF}, s{S_T}, 8")
        p(f"s_mul_i32 s{S_T}, s{S_B}, {self.o.wi}\ns_mul_i32 s{S_T3}, s{S_J}, {self.o.wj}\ns_add_u32 s{S_T}, s{S_T}, s{S_T3}")
        p(f"s_and_b32 s{S_OFF}, s{S_T}, 3")
        for c in range(4):
            p(f"s_xor_b32 s{S_T3}, s{S_OFF}, {c}\ns_lshl_b32 s{S_DW[c]}, s{S_T3}, 18")
        p(f"s_lshr_b32 s{S_T3}, s{S_OFF}, 1\ns_lshl_b32 s{S_DX[0]}, s{S_T3}, 7\ns_xor_b32 s{S_DX[1]}, s{S_DX[0]}, 128")
        p(f"s_mul_i32 s{S_T3}, s{S_B}, 143360")
        p(f"s_lshl_b32 s{S_T}, s{S_H}, 8")
        p("s_waitcnt lgkmcnt(0)")
        self.srd(p, 4, P_X, f"s{S_T3}", 0, 143360)
        p(f"s_add_u32 s8, s{P_WQ}, s{S_T}\ns_addc_u32 s9, s{P_WQ+1}, 0\ns_sub_u32 s10, 5242880, s{S_T}\ns_mov_b32 s11, 0x20000")
        if "x" in self.o.qab:
            p("s_mov_b32 s6, 0")
        if "w" in self.o.qab:
            p("s_mov_b32 s10, 0")
        lst = [f"s_add_u32 s{S_WQT}, s{S_WQOFF}, s{S_DW[0]}"]
        lst += self.x_dma(0)
        lst += self.wq_loads(0)
        lst += self.x_dma(1)
        for s in range(1, NRAW - 1):
            lst += self.wq_loads(s)
        self.put(p, lst)
        self.stamp(p, 13)
        if self.o.stamps:
            p(f"v_writelane_b32 v{V_STAMP}, s76, 0\nv_writelane_b32 v{V_STAMP}, s77, 1")
        p(f"s_lshl_b32 s{S_T}, s{S_PAIR}, 17\ns_lshr_b32 s{S_T3}, s{S_PAIR}, 15")
        nr = 0 if self.o.nokv else 131072
        self.srd(p, 12, P_K, f"s{S_T}", f"s{S_T3}", nr)
        self.srd(p, 16, P_V, f"s{S_T}", f"s{S_T3}", nr)
        p(f"s_lshl_b32 s{S_M[0]}, s{S_WAVE}, 15")
        for r in range(1, 8):
            p(f"s_add_u32 s{S_M[r]}, s{S_M[0]}, {r*4096}")
        for i in range(4):
            p(f"v_add_u32 v{t0}, {4*i}, v{g}")
            p(f"v_and_b32 v{t1}, 7, v{t0}")
            p(f"v_lshlrev_b32 v{t1}, 1, v{t1}")
            p(f"v_lshrrev_b32 v{t0}, 3, v{t0}")
            p(f"v_or_b32 v{t0}, v{t0}, v{t1}")
            p(f"v_xor_b32 v{t0}, v{t0}, v{n}")
            p(f"v_lshlrev_b32 v{t0}, 4, v{t0}")
            p(f"v_lshl_add_u32 v{V_DMA+i}, v{g}, 8, v{t0}")
        for k in range(self.o.pf0):
            self.put(p, self.pf_dma(k))
        self.srd(p, 68, P_WS, WS_FL, 0, 8192)
        p(f"s_lshl_b32 s{S_T}, s{S_B}, 8\ns_lshl_b32 s{S_T3}, s{S_WAVE}, 6\ns_add_u32 s{S_T}, s{S_T}, s{S_T3}\ns_lshl_b32 s{S_T3}, s{S_J}, 2\ns_add_u32 s{S_T}, s{S_T}, s{S_T3}")
        p(f"v_mov_b32 v{t0}, 0\nv_mov_b32 v{t1}, s{S_T}")
        self.put(p, [("vm", "zf", f"buffer_store_dword v{t0}, v{t1}, {SRD_FL}, 0 offen sc1")])
        self.put(p, [("vm", "zf", f"buffer_store_dword v{t0}, v{t1}, {SRD_FL}, 0 offen offset:32 sc1")])
        p(f"s_lshl_b32 s{S_T}, s2, 2\ns_add_u32 s{S_T}, s{S_T}, s{S_WAVE}")
        p(f"s_lshr_b32 s{S_T2}, s{S_T}, 3\ns_and_b32 s{S_T3}, s{S_T}, 7")
        p(f"s_mul_i32 s{S_T}, s{S_T2}, 40960\ns_mul_i32 s{S_CNT}, s{S_T3}, 160\ns_add_u32 s{S_T}, s{S_T}, s{S_CNT}")
        p(f"s_add_u32 s76, s{P_WO}, s{S_T}\ns_addc_u32 s77, s{P_WO+1}, 0\ns_sub_u32 s78, 40960, s{S_CNT}\ns_mov_b32 s79, 0x20000")
        p(f"s_lshl_b32 s{S_T}, s{S_T3}, 7\ns_add_u32 s{S_T}, s{S_T}, s{S_T2}\ns_mul_i32 s{S_T}, s{S_T}, 5120\ns_add_u32 s{S_T}, s{S_T}, {WS_WT}")
        self.srd(p, 64, P_WS, f"s{S_T}", 0, 5120)
        if "o" in self.o.qab:
            p("s_mov_b32 s78, 0\ns_mov_b32 s66, 0")
        p(f"s_movk_i32 s{S_T}, 6554")
        for i in range(5):
            p(f"v_add_u32 v{t0}, {64*i}, v{V_LANE}")
            p(f"v_mul_lo_u32 v{t1}, v{t0}, s{S_T}")
            p(f"v_lshrrev_b32 v{t1}, 16, v{t1}")
            p(f"v_mul_u32_u24 v{t1}, 1120, v{t1}")
            p(f"v_lshl_add_u32 v{V_WT+i}, v{t0}, 4, v{t1}")
        p(f"v_lshrrev_b32 v{t0}, 2, v{V_LANE}")
        p(f"v_mul_u32_u24 v{t0}, 160, v{t0}")
        p(f"v_and_b32 v{t1}, 3, v{V_LANE}")
        p(f"v_lshl_add_u32 v{t0}, v{t1}, 3, v{t0}")
        p(f"s_lshl_b32 s{S_WLDS}, s{S_WAVE}, 13\ns_add_u32 s{S_WLDS}, s{S_WLDS}, {XBUF}")
        p(f"v_add_u32 v{V_X1}, s{S_WLDS}, v{t0}")
        p(f"v_lshrrev_b32 v{t0}, 1, v{n}")
        p(f"v_xor_b32 v{t0}, v{t0}, v{g}")
        p(f"v_lshlrev_b32 v{t0}, 4, v{t0}")
        p(f"v_lshl_add_u32 v{t0}, v{n}, 7, v{t0}")
        p(f"v_add_u32 v{t0}, {XBUF}, v{t0}")
        p(f"s_and_b32 s{S_T}, s{S_OFF}, 1\ns_lshl_b32 s{S_T}, s{S_T}, 6")
        p(f"v_xor_b32 v{V_XRD}, s{S_T}, v{t0}")
        p(f"v_xor_b32 v{V_XRD+1}, 64, v{V_XRD}")
        p(f"v_and_b32 v{t1}, 7, v{n}")
        p(f"v_lshlrev_b32 v{t1}, 1, v{t1}")
        p(f"v_lshrrev_b32 v{t0}, 3, v{n}")
        p(f"v_or_b32 v{t0}, v{t0}, v{t1}")
        p(f"v_lshlrev_b32 v{t1}, 2, v{g}")
        p(f"v_xor_b32 v{t0}, v{t0}, v{t1}")
        p(f"v_lshlrev_b32 v{t0}, 4, v{t0}")
        p(f"v_lshl_add_u32 v{t0}, v{n}, 8, v{t0}")
        p(f"v_add_u32 v{V_KA}, s{S_M[0]}, v{t0}")
        for kk in range(1, 4):
            p(f"v_xor_b32 v{V_KA+kk}, {kk << 4}, v{V_KA}")
        m_, c_ = n, g
        p(f"v_lshrrev_b32 v{m_}, 2, v{V_LANE}")
        p(f"v_and_b32 v{c_}, 3, v{V_LANE}")
        p(f"v_and_b32 v{t1}, 7, v{m_}")
        p(f"v_lshlrev_b32 v{t1}, 1, v{t1}")
        p(f"v_lshrrev_b32 v{t0}, 3, v{m_}")
        p(f"v_or_b32 v{t0}, v{t0}, v{t1}")
        p(f"v_lshrrev_b32 v{t1}, 1, v{c_}")
        p(f"v_xor_b32 v{t0}, v{t0}, v{t1}")
        p(f"v_lshlrev_b32 v{t0}, 4, v{t0}")
        p(f"v_lshl_add_u32 v{t0}, v{m_}, 8, v{t0}")
        p(f"v_and_b32 v{t1}, 1, v{c_}")
        p(f"v_lshl_add_u32 v{t0}, v{t1}, 3, v{t0}")
        p(f"v_add_u32 v{V_VA}, s{S_M[0]}, v{t0}")
        for d in range(1, 8):
            p(f"v_xor_b32 v{V_VA+d}, {d << 5}, v{V_VA}")
        p(f"v_lshlrev_b32 v{V_OST}, 4, v{V_LANE}")
        p(f"v_lshlrev_b32 v{V_L2}, 7, v{V_LANE}")
        p(f"s_mov_b32 s{S_C}, {f32bits(CSCALE):#x}")
        p(f"s_mov_b32 s{S_SEL0}, 0x05040100\ns_mov_b32 s{S_SEL1}, 0x07060302")
        self.put(p, [("wait", "x0")])
        p("s_barrier")
        for t in range(7):
            p(f"ds_read_b128 {vr(V_XF + t*4)}, v{V_XRD} offset:{t*2048}")
        self.put(p, [("wait", "wq0")])
        for s in self.perms(0, 0):
            p(s)
        self.stamp(p, 1)
        return p

    def x_dma(self, m):
        out = [f"s_add_u32 s{S_XT}, s{S_XOFF}, s{S_DX[m % 2]}"]
        for i in range(4):
            out.append(f"s_add_u32 m0, s{S_XLDS}, {(m % 2)*16384 + i*1024}")
            if i == 2:
                out.append(f"s_add_u32 s{S_XT}, s{S_XT}, 20480")
            out.append(("vm", f"x{m}", f"buffer_load_dwordx4 v{V_XS + (i & 1)}, {SRD_X}, s{S_XT} offen lds"))
        if m % 2 == 1:
            out += [f"s_add_u32 s{S_XOFF}, s{S_XOFF}, 256", f"s_cmp_ge_u32 s{S_XOFF}, 1280", f"s_cselect_b32 s{S_XOFF}, 0, s{S_XOFF}"]
        return out

    def wq_loads(self, s):
        base = V_RAW + (s % NRAW) * 32
        out = []
        for i in range(8):
            out.append(("vm", f"wq{s}", f"buffer_load_dwordx4 {vr(base + i*4)}, v{V_WQ8+i}, {SRD_WQ}, s{S_WQT} offen"))
        if s % 4 == 3:
            out += [f"s_add_u32 s{S_WQOFF}, s{S_WQOFF}, {8192*128}",
                    f"s_cmp_ge_u32 s{S_WQOFF}, 5242880", f"s_cselect_b32 s{S_WQOFF}, 0, s{S_WQOFF}"]
        out.append(f"s_add_u32 s{S_WQT}, s{S_WQOFF}, s{S_DW[(s + 1) % 4]}")
        return out

    def perms(self, s, j):
        base = V_RAW + (s % NRAW) * 32
        d = V_AF + (j & 1) * 4
        sel = S_SEL1 if (j & 1) else S_SEL0
        return [f"v_perm_b32 v{d+r}, v{base + (2*r+1)*4 + (j >> 1)}, v{base + (2*r)*4 + (j >> 1)}, s{sel}" for r in range(4)]

    def pf_dma(self, k):
        q, i = k // 8, k % 8
        srd = SRD_K if q % 2 == 0 else SRD_V
        tag = ("K" if q % 2 == 0 else "V") + str(q // 2)
        out = [f"s_mov_b32 m0, s{S_M[(q % 4)*2 + i // 4]}"]
        if i % 4 == 0:
            out.append(f"s_movk_i32 s{S_KOFF}, {(q // 2)*8192 + (i // 4)*4096}")
        out.append(("vm", tag, f"buffer_load_dwordx4 v{V_DMA + i % 4}, {srd}, s{S_KOFF} offen offset:{(i % 4)*1024} {self.kvflags} lds"))
        return out

    def qstep(self, seg, s, pf):
        NS = 20
        xf = V_XF + (s & 1) * 28
        xn = V_XF + ((s + 1) & 1) * 28
        mf = []
        for j in range(8):
            for t in range(7):
                c = "0" if s == 0 else ar(acc(j, t))
                mf.append(f"{MFMA} {ar(acc(j,t))}, {vr(V_AF+(j&1)*4)}, {vr(xf+t*4)}, {c}")
        fl = {-1: ["s_waitcnt lgkmcnt(0)"]}
        for j in range(8):
            if j < 7:
                ops = self.perms(s, j + 1)
            elif s + 1 < NS:
                ops = [("wait", f"wq{s+1}")] + self.perms(s + 1, 0)
            else:
                ops = []
            if ops:
                spread(fl, ops, j * 7, j * 7 + 4 + (1 if j == 7 else 0))
        groups = []
        if s + NRAW - 1 < NS:
            w = self.wq_loads(s + NRAW - 1)
            groups += [[x] for x in w[:7]] + [w[7:]]
        after = []
        BAR = 20
        bar = (s % 2 == 1)
        nx = 0
        if bar and (s + 3) // 2 < 10:
            x = self.x_dma((s + 3) // 2)
            after += [x[0:3], x[3:5], x[5:8], x[8:]]
            nx = 4
        for k in pf:
            after.append(self.pf_dma(k))
        if s == self.o.fragstep:
            ops = [("wait", "V0")] + self.k_reads(0)
            for d in range(8):
                ops += self.v_read(0, d)
            spread(fl, ops[:13], 1, 20)
            spread(fl, ops[13:], 32, 54)
        if self.o.l2pf:
            steps = [int(x) for x in self.o.l2pf.split(",")]
            for idx, st in enumerate(steps):
                if st == s:
                    srd = SRD_K if idx % 2 == 0 else SRD_V
                    off = (3 + idx // 2) * 8192
                    after.append([f"s_mov_b32 s{S_T2}, {off}",
                                  ("vm", "l2", f"buffer_load_dword v{V_L2+1}, v{V_L2}, {srd}, s{S_T2} offen {self.o.l2flags}")])
        if s == NS - 1:
            for i in range(5):
                after.append([f"s_add_u32 m0, s{S_WLDS}, {i*1024}",
                              ("vm", "wo", f"buffer_load_dwordx4 v{V_WT+i}, {SRD_AUX}, 0 offen lds")])
        pre_n = min(len(groups), 4)
        for gq, pos in zip(groups[:pre_n], [2, 6, 11, 16]):
            for k, op in enumerate(gq):
                fl.setdefault(pos + k, []).append(op)
        if bar:
            mid = [("wait", f"x{(s+1)//2}"), "s_barrier"] if s + 1 < NS else ["s_barrier"]
            fl.setdefault(BAR, []).extend(mid)
        if s + 1 < NS:
            for t in range(7):
                fl.setdefault(BAR + 1 + t + (t + 3) // 4, []).append(
                    f"ds_read_b128 {vr(xn + t*4)}, v{V_XRD + ((s+1) & 1)} offset:{(((s+1)//2) % 2)*16384 + t*2048}")
        rest = after[:nx] + groups[pre_n:] + after[nx:]
        if rest:
            lo, hi = BAR + 5, 53
            last = 0
            for k, gq in enumerate(rest):
                pos = lo + (k * (hi - lo)) // len(rest)
                for kk, op in enumerate(gq):
                    last = max(last, min(55, pos + (kk + 1) // 2))
                    fl.setdefault(last, []).append(op)
        self.interleave(seg, mf, fl)

    def qphase(self):
        q = Seg("qphase")
        lo, hi = self.o.pflo, self.o.pfhi
        sched = {s: [] for s in range(20)}
        NPF = 48
        p0 = self.o.pf0
        stepof = lambda k: lo + ((k - p0) * (hi - lo)) // (NPF - p0)
        for k in range(p0, NPF):
            sched[stepof(k)].append(k)
        assert stepof(max(15, p0)) < self.o.fragstep < stepof(32)
        for s in range(20):
            self.qstep(q, s, sched[s])
        return q

    def conv_ops(self, t):
        ops = []
        k = 0
        for kk in range(4):
            for rho in range(4):
                t0 = V_P + 20 + (k % 4) * 2
                k += 1
                ops += [f"v_accvgpr_read_b32 v{t0}, a{acc(2*rho, t) + kk}",
                        f"v_accvgpr_read_b32 v{t0+1}, a{acc(2*rho+1, t) + kk}",
                        f"v_pk_mul_f32 {vr(t0, 2)}, {vr(t0, 2)}, v[252:253]",
                        f"v_cvt_pk_bf16_f32 v{V_QF + (t*4+kk)*4 + rho}, v{t0}, v{t0+1}"]
        return ops

    def convert(self):
        c = Seg("convert")
        self.stamp(c, 2)
        c(f"s_movk_i32 s{S_KOFF}, 24576\ns_movk_i32 s{S_KOFF2}, 28672\ns_movk_i32 s{S_VOFF}, 24576\ns_movk_i32 s{S_VOFF2}, 28672")
        c(f"v_mov_b32 v252, s{S_C}\nv_mov_b32 v253, s{S_C}")
        for x in self.conv_ops(0):
            c(x)
        for st in range(9):
            A = self.conv_ops(st + 1) if st + 1 <= 6 else []
            B = []
            if st <= 6:
                B += self.qk_mfmas(st, "first")
                if st == 6:
                    kr = self.k_reads(1)
                    B = [("wait", "K1")] + [y for pair in zip(B, kr) for y in pair]
            C = []
            if 1 <= st <= 7:
                f1, f2 = self.softmax_ops(st - 1, "first", 0)
                C = f1 + f2
            streams = [x for x in (B, C, A) if x]
            pos = [0] * len(streams)
            total = sum(len(x) for x in streams)
            out = []
            for n in range(total):
                i = min((j for j in range(len(streams)) if pos[j] < len(streams[j])),
                        key=lambda j: (pos[j] + 0.5) / len(streams[j]))
                out.append(streams[i][pos[i]])
                pos[i] += 1
            self.put(c, out)
        return c

    def wo_piece(self, s0):
        self.put(s0, [("wait", "wo")])
        for tau in range(5):
            for e in range(2):
                s0(f"ds_read_b64_tr_b16 {ar(acc(tau, 6) + e*2, 2)}, v{V_X1} offset:{e*2560 + tau*32}")
        s0(f"v_add_u32 v{V_X1}, 4096, v{V_OST}")
        s0("s_waitcnt lgkmcnt(0)")
        for tau in range(5):
            va, of = (V_OST, tau * 1024) if tau < 4 else (V_X1, 0)
            self.put(s0, [("vm", "wst", f"buffer_store_dwordx4 {ar(acc(tau, 6))}, v{va}, {SRD_WT}, 0 offen offset:{of} sc1")])

    def poll(self, seg, name, load, cmp, sleep):
        seg(f"s_mov_b32 s{S_SPIN}, 0")
        seg(f"L_{name}:")
        seg(load)
        seg("s_waitcnt vmcnt(0)")
        for c in cmp:
            seg(c)
        seg(f"s_cbranch_vccz L_{name}_done")
        seg(f"s_sleep {sleep}\ns_add_u32 s{S_SPIN}, s{S_SPIN}, 1\ns_cmp_lt_u32 s{S_SPIN}, {self.o.spin}\ns_cbranch_scc1 L_{name}")
        seg(f"L_{name}_done:")

    def tile_dma(self, which, blk):
        srd = SRD_K if which == "K" else SRD_V
        o1, o2 = (S_KOFF, S_KOFF2) if which == "K" else (S_VOFF, S_VOFF2)
        mi = (blk & 1) * 4 + (0 if which == "K" else 2)
        out = []
        for h, o in enumerate((o1, o2)):
            out.append(f"s_mov_b32 m0, s{S_M[mi + h]}")
            for i in range(4):
                out.append(("vm", f"{which}{blk}",
                            f"buffer_load_dwordx4 v{V_DMA+i}, {srd}, s{o} offen offset:{i*1024} {self.kvflags} lds"))
            out.append(f"s_add_u32 s{o}, s{o}, 8192")
        return out

    def k_read(self, blk, a, kk):
        return f"ds_read_b128 {ar(A_KF + (a*4+kk)*4)}, v{V_KA+kk} offset:{(blk & 1)*16384 + a*4096}"

    def k_reads(self, blk):
        return [self.k_read(blk, a, kk) for a in range(2) for kk in range(4)]

    def v_read(self, blk, d):
        return [f"ds_read_b64_tr_b16 {vr(V_VF + d*4 + a*2, 2)}, v{V_VA+d} offset:{(blk & 1)*16384 + 8192 + a*4096}" for a in range(2)]

    def softmax_ops(self, t, mode, par):
        S = V_S + (t & 1) * 8
        nm = V_NM + 4 * t
        Ln = V_L + par * 7 + t
        Lo = V_L + (par ^ 1) * 7 + t
        u = V_U
        ops = []
        if mode != "fast":
            ops += [f"v_max3_f32 v{u}, v{S}, v{S+1}, v{S+2}",
                    f"v_max3_f32 v{u}, v{u}, v{S+3}, v{S+4}",
                    f"v_max3_f32 v{u}, v{u}, v{S+5}, v{S+6}",
                    f"v_max_f32 v{u}, v{u}, v{S+7}",
                    f"v_mov_b32 v{u+1}, v{u}",
                    f"v_permlane16_swap_b32 v{u}, v{u+1}",
                    f"v_max_f32 v{u}, v{u}, v{u+1}",
                    f"v_mov_b32 v{u+1}, v{u}",
                    f"v_permlane32_swap_b32 v{u}, v{u+1}",
                    f"v_max_f32 v{u}, v{u}, v{u+1}"]
            if mode == "first":
                ops += [f"v_sub_f32 v{nm+i}, 0, v{u}" for i in range(4)]
                ops += [f"v_mov_b32 v{Lo}, 0"]
            else:
                ops += [f"v_sub_f32 v{u}, 0, v{u}",
                        f"v_min_f32 v{u}, v{u}, v{nm}",
                        f"v_sub_f32 v{u+1}, v{u}, v{nm}",
                        f"v_exp_f32 v{u+1}, v{u+1}"]
                ops += [f"v_mov_b32 v{nm+i}, v{u}" for i in range(4)]
                ops += [f"v_mul_f32 v{Lo}, v{Lo}, v{u+1}"]
                for d in range(8):
                    for r in range(4):
                        a = acc(d, t) + r
                        tt = u + 2 + (r & 1)
                        ops += [f"v_accvgpr_read_b32 v{tt}, a{a}",
                                f"v_mul_f32 v{tt}, v{tt}, v{u+1}",
                                f"v_accvgpr_write_b32 a{a}, v{tt}"]
            ops += [f"v_add_f32 v{S+i}, v{S+i}, v{nm}" for i in range(8)]
        ex = [f"v_exp_f32 v{S+i}, v{S+i}" for i in range(8)]
        cv = [f"v_cvt_pk_bf16_f32 v{V_P + t*4 + r}, v{S+2*r}, v{S+2*r+1}" for r in range(4)]
        a = [f"v_add_f32 v{u+2}, v{S}, v{S+1}",
             f"v_add_f32 v{u+3}, v{S+2}, v{S+3}",
             f"v_add_f32 v{u+4}, v{S+4}, v{S+5}",
             f"v_add_f32 v{Ln}, v{S+6}, v{S+7}",
             f"v_add_f32 v{u+2}, v{u+2}, v{u+3}",
             f"v_add_f32 v{Ln}, v{Ln}, v{u+4}",
             f"v_add_f32 v{u+2}, v{u+2}, v{Lo}",
             f"v_add_f32 v{Ln}, v{Ln}, v{u+2}"]
        first = ops + [ex[0], ex[1], ex[2], a[0], ex[3], ex[4], a[1], ex[5], a[4], ex[6], a[2], ex[7], a[6]]
        second = [cv[0], a[3], cv[1], a[5], cv[2], a[7], cv[3]]
        return first, second

    def softmax_parts(self, t, par):
        S = V_S + (t & 1) * 8
        Ln = V_L + par * 7 + t
        Lo = V_L + (par ^ 1) * 7 + t
        u = V_U
        ex = [f"v_exp_f32 v{S+i}, v{S+i}" for i in range(8)]
        cv = [f"v_cvt_pk_bf16_f32 v{V_P + t*4 + r}, v{S+2*r}, v{S+2*r+1}" for r in range(4)]
        ad = [f"v_add_f32 v{u+2}, v{S}, v{S+1}",
              f"v_add_f32 v{u+3}, v{S+2}, v{S+3}",
              f"v_add_f32 v{u+4}, v{S+4}, v{S+5}",
              f"v_add_f32 v{Ln}, v{S+6}, v{S+7}",
              f"v_add_f32 v{u+2}, v{u+2}, v{u+3}",
              f"v_add_f32 v{Ln}, v{Ln}, v{u+4}",
              f"v_add_f32 v{u+2}, v{u+2}, v{Lo}",
              f"v_add_f32 v{Ln}, v{Ln}, v{u+2}"]
        return ex, ad, cv

    def qk_mfmas(self, t, mode, kreg=None):
        S = V_S + (t & 1) * 8
        out = []
        for a in range(2):
            for kk in range(4):
                if kk == 0:
                    c = vr(V_NM + 4 * t) if mode == "fast" else "0"
                else:
                    c = vr(S + a * 4)
                kf = ar(A_KF + (a * 4 + kk) * 4) if kreg is None else vr(kreg + (a * 4 + kk) * 4)
                out.append(f"{MFMA} {vr(S+a*4)}, {kf}, {vr(V_QF+(t*4+kk)*4)}, {c}")
        return out

    def pv_mfmas(self, t, zero):
        return [f"{MFMA} {ar(acc(d,t))}, {vr(V_VF+d*4)}, {vr(V_P+t*4)}, {'0' if zero else ar(acc(d,t))}" for d in range(8)]

    def superphase(self, seg, j, mode="fast", pv=True, pvzero=False, qk=True, exact=False, slow_label=None):
        par = j & 1
        mf = []
        fl = {}
        pos = {}
        for st in range(8):
            if pv and st >= 1:
                pos[("pv", st - 1)] = len(mf)
                mf += self.pv_mfmas(st - 1, pvzero)
            if qk and st <= 6:
                pos[("qk", st)] = len(mf)
                mf += self.qk_mfmas(st, mode)
        n = len(mf)
        if qk:
            fl[-1] = ["s_waitcnt lgkmcnt(15)" if pv else "s_waitcnt lgkmcnt(0)"]
        if pv:
            p0 = pos[("pv", 0)]
            fl.setdefault(p0 - 1, []).append("s_waitcnt lgkmcnt(8)")
            fl.setdefault(p0 + 3, []).append("s_waitcnt lgkmcnt(0)")
        if qk:
            for t in range(7):
                first, second = self.softmax_ops(t, mode, par)
                if pv:
                    s0 = pos[("pv", t)]
                    s1 = s0 + 16 if t < 6 else n
                else:
                    s0 = pos[("qk", t + 1)] if t < 6 else n - 1
                    s1 = s0 + 8 if t < 6 else n
                if pv and mode == "fast":
                    ex, ad, cv = self.softmax_parts(t, par)
                    if t < 6:
                        plan = {0: [ex[0]], 1: [ex[1]], 2: [ex[2]], 3: [ex[3]], 4: [ex[4]], 5: [ad[0], ad[1]], 6: [ex[5]],
                                8: [ex[6]], 9: [cv[0], ad[4]], 10: [ex[7]], 11: [cv[1], ad[2]], 12: [ad[6], cv[2]],
                                13: [ad[3], cv[3]], 14: [ad[5], ad[7]]}
                        for gp, ops in plan.items():
                            fl.setdefault(s0 + gp, []).extend(ops)
                    else:
                        plan = {0: [ex[0]], 1: [ex[1]], 2: [ex[2]], 3: [ex[3]], 4: [ex[4]], 5: [ex[5]], 6: [ex[6]]}
                        for gp, ops in plan.items():
                            fl.setdefault(s0 + gp, []).extend(ops)
                        tail_second = [ex[7], ad[0], ad[1], ad[2], ad[4], ad[3], ad[6], ad[5], ad[7]]
                        tail_cv = cv
                elif t < 6:
                    lo = s0 + (1 if pv else 0)
                    mid = s0 + (s1 - s0) * 11 // 16 if pv else s0 + (s1 - s0) * 5 // 8
                    spread(fl, first, lo, mid)
                    spread(fl, second, mid, s1)
                else:
                    fl.setdefault(n - 1, []).extend(first)
                    tail_second = second
                    tail_cv = []
        if qk and j >= 1:
            d = self.tile_dma("K", j + 2)
            fl.setdefault(-1, []).append(d[0])
            for gp, ops in enumerate([[d[1]], [d[2]], [d[3]], [d[4], d[6]], [d[5], d[7]], [d[8]], [d[9]], [d[10], d[11]]]):
                fl.setdefault(gp, []).extend(ops)
        if pv and qk:
            d = self.tile_dma("V", j + 1)
            if j == 1:
                d = []
                for h in range(2):
                    d.append(f"s_mov_b32 m0, s{S_WLDS}")
                    d += [("vm", "dummy", f"buffer_load_dwordx4 v{V_DMA+i}, {SRD_V}, s{S_T2} offen offset:{i*1024} lds") for i in range(4)]
                    d.append("s_nop 0")
                fl.setdefault(-1, []).append(f"s_mov_b32 s{S_T2}, 0x40000")
            seq = [[d[0]], [d[1]], [d[2]], [d[3]], [d[4], d[6]], [d[5], d[7]], [d[8]], [d[9]], [d[10], d[11]]]
            gaps = []
            for t in range(5):
                gaps += [pos[("pv", t)] + 7, pos[("pv", t)] + 15]
            for gp, ops in zip(gaps, seq):
                fl.setdefault(gp, []).extend(ops)
        if qk and j < 15:
            q6 = pos[("qk", 6)]
            w = ("wait", f"K{j+1}") if exact else "s_waitcnt vmcnt(24)"
            fl.setdefault(q6 - 1, []).append(w)
            for i in range(8):
                fl.setdefault(q6 + i, []).append(self.k_read(j + 1, i // 4, i % 4))
        tail = []
        if qk:
            tail += tail_second
            if mode == "fast":
                u = V_U + 5
                L = V_L + par * 7
                fl.setdefault(pos[("pv", 5)] + 7 if pv else n - 6, []).extend(
                    [f"v_max3_f32 v{u}, v{L}, v{L+1}, v{L+2}", f"v_max3_f32 v{u}, v{u}, v{L+3}, v{L+4}"])
                tail += [f"v_max3_f32 v{u}, v{u}, v{L+5}, v{L+6}",
                         f"v_cmp_lt_f32 vcc, {f32bits(self.o.thresh):#x}, v{u}"]
            tail += tail_cv
            if j > 0:
                tail.append(("wait", f"V{j}") if exact else "s_waitcnt vmcnt(16)")
            if mode == "fast":
                tail += [f"s_cbranch_vccnz {slow_label}", f"{slow_label}_ret:"]
            if j > 0:
                for d in range(8):
                    tail += self.v_read(j, d)
        if not qk:
            u = V_U
            ops = []
            for t in range(7):
                l = V_L + 7 + t
                ops += [f"v_mov_b32 v{u}, v{l}", "s_nop 0", f"v_permlane16_swap_b32 v{l}, v{u}", f"v_add_f32 v{l}, v{l}, v{u}",
                        f"v_mov_b32 v{u}, v{l}", "s_nop 0", f"v_permlane32_swap_b32 v{l}, v{u}", f"v_add_f32 v{l}, v{l}, v{u}",
                        f"v_rcp_f32 v{V_RL + 2*t}, v{l}", f"v_rcp_f32 v{V_RL + 2*t + 1}, v{l}"]
            spread(fl, ops, 0, 30)
            spread(fl, self.epi_ops(0)[:52], 30, n)
        fl.setdefault(n - 1, []).extend(tail)
        self.interleave(seg, mf, fl)

    def slowpath(self):
        s = Seg("slow")
        def swap():
            for t in range(7):
                s(f"v_swap_b32 v{V_L+t}, v{V_L+7+t}")
        s("L_slowP:\ns_nop 1")
        s(f"s_mov_b32 s{S_RET}, 2\ns_movk_i32 s{S_T}, 8192\ns_branch L_slow_body")
        s("L_slowE:\ns_nop 1")
        swap()
        s(f"s_mov_b32 s{S_RET}, 0\ns_lshl_b32 s{S_T}, s{S_CNT}, 13\ns_branch L_slow_body")
        s("L_slowO:\ns_nop 1")
        s(f"s_mov_b32 s{S_RET}, 1\ns_lshl_b32 s{S_T}, s{S_CNT}, 13\ns_add_u32 s{S_T}, s{S_T}, 8192")
        s("L_slow_body:")
        s(f"v_and_b32 v{V_U}, 15, v{V_LANE}\nv_lshrrev_b32 v{V_U+1}, 4, v{V_LANE}")
        s(f"v_lshlrev_b32 v{V_U}, 8, v{V_U}\nv_lshl_add_u32 v{V_U}, v{V_U+1}, 6, v{V_U}")
        s(f"s_add_u32 s{S_T2}, s{S_T}, 4096\ns_nop 7")
        for a in range(2):
            for kk in range(4):
                s(f"buffer_load_dwordx4 {vr(V_VF + (a*4+kk)*4)}, v{V_U}, {SRD_K}, s{S_T if a == 0 else S_T2} offen offset:{kk*16}")
        s("s_waitcnt vmcnt(0)")
        mf = []
        fl = {}
        for t in range(7):
            mf += self.qk_mfmas(t, "slow", kreg=V_VF)
            first, second = self.softmax_ops(t, "slow", 1)
            if t < 6:
                spread(fl, first + second, (t + 1) * 8, (t + 2) * 8)
            else:
                fl.setdefault(55, []).extend(first + second)
        self.interleave(s, mf, fl)
        s("s_nop 3")
        s(f"s_cmp_eq_u32 s{S_RET}, 1\ns_cbranch_scc1 L_slowO_ret")
        s(f"s_cmp_eq_u32 s{S_RET}, 2\ns_cbranch_scc1 L_slowP_ret")
        swap()
        s("s_nop 1\ns_branch L_slowE_ret")
        return s

    def epi_ops(self, t):
        ops = []
        k = 0
        for uu in range(4):
            dst = V_QF + (uu * 7 + t) * 4
            for half in range(2):
                for pr in range(2):
                    t0 = V_S + (k % 4) * 2
                    k += 1
                    a = acc(2 * uu + half, t) + 2 * pr
                    ops += [f"v_accvgpr_read_b32 v{t0}, a{a}", f"v_accvgpr_read_b32 v{t0+1}, a{a+1}",
                            f"v_pk_mul_f32 {vr(t0, 2)}, {vr(t0, 2)}, {vr(V_RL + 2*t, 2)}",
                            f"v_cvt_pk_bf16_f32 v{dst + half*2 + pr}, v{t0}, v{t0+1}"]
        return ops

    def oacc(self, i):
        return ar(i * 4) if i < 64 else vr(228 + (i - 64) * 4)

    def tail(self):
        e = Seg("tail")
        self.vq.q = []
        u = V_U
        LF = V_L + 7
        PT = 17920
        pool = [vr(136 + 4 * i) for i in range(8)] + [vr(184 + 4 * i) for i in range(11)]
        late_pool = [vr(168 + 4 * i) for i in range(4)]
        apool = []
        loc = {}
        for uu in range(4):
            for t in range(7):
                loc[("B", "own", uu, t)] = vr(V_QF + (uu * 7 + t) * 4)
        seq = [(0, st) for st in range(4)] + [(1, st) for st in range(4)] + \
              [(0, st) for st in range(4, 16)] + [(1, st) for st in range(4, 16)]
        work = []
        for k in range(32):
            if k in (16, 28):
                for ia in range(5):
                    for kk in range(k, k + 4):
                        work += [(kk, ia, t) for t in range(7)]
            elif k in (17, 18, 19, 29, 30, 31):
                continue
            else:
                work += [(k, ia, t) for ia in range(5) for t in range(7)]

        def bkey(k, t):
            ps, st = seq[k]
            return ("B", "own", st, t) if st < 4 else ("B", ps, st, t)
        lastA, lastB, firstA, firstB = {}, {}, {}, {}
        for n, (k, ia, t) in enumerate(work):
            lastA[(k, ia)] = n
            lastB[bkey(k, t)] = n
            firstA.setdefault((k, ia), n)
            firstB.setdefault(bkey(k, t), n)
        todoA = sorted(firstA, key=firstA.get)
        todoB = [x for x in sorted(firstB, key=firstB.get) if x[1] != "own"]
        state = {"covered": -1, "bar": False, "ds": [], "head": None, "nA": 0}

        def a_load():
            if not todoA or not (pool or apool) or len(self.vq.q) - 1 - state["covered"] >= self.o.maxq:
                return False
            k, i = todoA.pop(0)
            ps, st = seq[k]
            reg = apool.pop(0) if apool else pool.pop(0)
            loc[("A", k, i)] = reg
            state["nA"] += 1
            if state["head"] != (ps, st // 4):
                state["head"] = (ps, st // 4)
                e(f"s_add_u32 s{S_Q}, s{S_WAVE}, {st // 4}\ns_and_b32 s{S_Q}, s{S_Q}, 3\ns_mul_i32 s{S_DW[0]}, s{S_Q}, {4*5120}")
                if ps:
                    e(f"s_add_u32 s{S_DW[0]}, s{S_DW[0]}, {128*5120}")
                for c in range(1, 4):
                    e(f"s_add_u32 s{S_DW[c]}, s{S_DW[0]}, {c*5120}")
            va, of = (V_OST, i * 1024) if i < 4 else (V_X1, 0)
            self.put(e, [("vm", f"A{k}_{i}", f"buffer_load_dwordx4 {reg}, v{va}, {SRD_WT}, s{S_DW[st % 4]} offen offset:{of} sc1")])
            return True

        def b_load(limit):
            if not todoB or not pool or not state["bar"] or firstB[todoB[0]] > limit or len(state["ds"]) >= 14:
                return False
            key = todoB.pop(0)
            _, ps, st, t = key
            reg = pool.pop(0)
            loc[key] = reg
            e(f"ds_read_b128 {reg}, v{V_DMA + st // 4} offset:{((st % 4)*7 + t)*1024}")
            state["ds"].append(key)
            return True

        def need_vm(tag):
            pos = max(n for n, x in enumerate(self.vq.q) if x == tag)
            if pos > state["covered"]:
                e(f"s_waitcnt vmcnt({min(63, len(self.vq.q) - 1 - pos)})")
                state["covered"] = pos

        def need_b(key):
            if key in state["ds"]:
                n = state["ds"].index(key)
                e(f"s_waitcnt lgkmcnt({len(state['ds']) - 1 - n})")
                del state["ds"][:n + 1]

        self.stamp(e, 4)
        e("s_waitcnt vmcnt(0)")
        e(f"v_and_b32 v{u+2}, 0x01010101, v{u+2}\nv_cmp_ne_u32 vcc, 0x01010101, v{u+2}")
        e("s_cbranch_vccz L_pollw_done")
        self.poll(e, "pollw", f"buffer_load_dword v{u+2}, v{u+3}, {SRD_AUX}, 0 offen sc1",
                  [f"v_and_b32 v{u+2}, 0x01010101, v{u+2}", f"v_cmp_ne_u32 vcc, 0x01010101, v{u+2}"], 8)
        e(f"s_lshl_b32 s{S_T}, s{S_WAVE}, 8\ns_lshl_b32 s{S_T2}, s{S_J}, 4\ns_add_u32 s{S_T}, s{S_T}, s{S_T2}\ns_mul_i32 s{S_T}, s{S_T}, 5120\ns_add_u32 s{S_T}, s{S_T}, {WS_WT}")
        self.srd(e, 64, P_WS, f"s{S_T}", 0, 0 if "A" in self.o.qab else 144 * 5120)
        e(f"v_add_u32 v{V_X1}, 4096, v{V_OST}")
        for _ in range(len(pool)):
            a_load()
        for i in range(4):
            e(f"s_add_u32 s{S_T}, s{S_WAVE}, {i}\ns_and_b32 s{S_T}, s{S_T}, 3\ns_lshl_b32 s{S_T}, s{S_T}, 15")
            e(f"v_add_u32 v{V_DMA+i}, s{S_T}, v{V_OST}")
        for t in range(7):
            ops = self.epi_ops(t)
            for x in (ops[52:] if t == 0 else ops):
                e(x)
            for uu in range(4):
                e(f"ds_write_b128 v{V_DMA}, {vr(V_QF + (uu*7 + t)*4)} offset:{(uu*7 + t)*1024}")
        pool.extend(late_pool)
        e(f"s_lshl_b32 s{S_T}, s{S_B}, 3\ns_lshl_b32 s{S_T2}, s{S_WAVE}, 1\ns_add_u32 s{S_T}, s{S_T}, s{S_T2}\ns_lshl_b32 s{S_T}, s{S_T}, 3\ns_add_u32 s{S_T}, s{S_T}, s{S_J}")
        e(f"s_mul_i32 s{S_T}, s{S_T}, {PT}")
        self.srd(e, 20, P_WS, f"s{S_T}", 0, 0 if "P" in self.o.qab else 9 * PT)
        e(f"s_lshl_b32 s{S_T}, s{S_B}, 8\ns_lshl_b32 s{S_T3}, s{S_WAVE}, 6\ns_add_u32 s{S_T}, s{S_T}, s{S_T3}\ns_lshl_b32 s{S_T3}, s{S_J}, 2\ns_add_u32 s{S_T}, s{S_T}, s{S_T3}")
        e(f"v_mov_b32 v{u+5}, s{S_T}\nv_lshlrev_b32 v{u+4}, 3, v{V_LANE}")
        self.stamp(e, 5)

        CV = [6, 10, 14]

        held = []

        def cvt_ops(ps, pair):
            hold = (ps == 0 and self.o.burst)
            if hold:
                gr = pool.pop()
                g = int(gr[2:gr.index(":")])
            else:
                g = CV[pair % 3]
            ops = []
            for h in range(2):
                ti = 2 * pair + h
                if ti >= 35:
                    break
                src = self.oacc(ps * 35 + ti)
                base = int(src[2:src.index(":")])
                for pr in range(2):
                    if src[0] == "a":
                        ta = u + 2 * pr
                        ops += [f"v_accvgpr_read_b32 v{ta}, a{base + 2*pr}", f"v_accvgpr_read_b32 v{ta+1}, a{base + 2*pr + 1}",
                                f"v_cvt_pk_bf16_f32 v{g + 2*h + pr}, v{ta}, v{ta+1}"]
                    else:
                        ops.append(f"v_cvt_pk_bf16_f32 v{g + 2*h + pr}, v{base + 2*pr}, v{base + 2*pr + 1}")
                if ps == 0:
                    ops.append(("free", src))
            off = ps * 8 * PT + pair * 1024
            st = [f"s_mov_b32 s{S_T3}, {off}"]
            if 2 * pair + 1 < 35:
                st.append(("vm", f"P{ps}", f"buffer_store_dwordx4 {vr(g)}, v{V_OST}, {SRD_O}, s{S_T3} offen {self.o.pflags}"))
            else:
                st.append(("vm", f"P{ps}", f"buffer_store_dwordx2 {vr(g, 2)}, v{u+4}, {SRD_O}, s{S_T3} offen {self.o.pflags}"))
            if hold:
                held.extend(st + [("freev", gr)])
            else:
                ops += st
            return ops

        def flag(ps):
            e(f"v_mov_b32 v253, 1")
            self.put(e, [("vm", "fl", f"buffer_store_dword v253, v{u+5}, {SRD_FL}, 0 offen offset:{32*ps} sc1")])

        S_JC, S_PB, S_MK = S_DX[0], S_DX[1], S_DX[2]
        rreg = {}

        def red_setup():
            e(f"s_and_b32 s{S_JC}, s{S_J}, 6\ns_and_b32 s{S_PB}, s{S_J}, 1\ns_mul_i32 s{S_PB}, s{S_PB}, 9\ns_add_u32 s{S_PB}, s{S_PB}, s{S_WAVE}")
            e(f"s_lshl_b32 s{S_T}, s{S_B}, 3\ns_add_u32 s{S_T}, s{S_T}, s{S_JC}\ns_lshl_b32 s{S_T2}, s{S_T}, 5\ns_mul_i32 s{S_T}, s{S_T}, {8*PT}")
            self.srd(e, 64, P_WS, f"s{S_T}", 0, 16 * PT)
            e(f"s_mul_i32 s{S_Q}, s{S_JC}, 160\ns_mul_i32 s{S_T}, s{S_B}, 143360\ns_add_u32 s{S_T}, s{S_T}, s{S_Q}")
            e(f"s_add_u32 s72, s{P_OUT}, s{S_T}\ns_addc_u32 s73, s{P_OUT+1}, 0\ns_sub_u32 s74, 143360, s{S_Q}\ns_mov_b32 s75, 0x20000")
            e(f"v_and_b32 v2, 15, v{V_LANE}\nv_lshrrev_b32 v3, 4, v{V_LANE}\nv_mul_u32_u24 v2, 1280, v2\nv_lshl_add_u32 v2, v3, 3, v2")
            e(f"v_and_b32 v3, 7, v{V_LANE}\nv_lshlrev_b32 v3, 2, v3")
            e(f"s_lshl_b32 s{S_T}, s{S_PB}, 10\nv_add_u32 v4, s{S_T}, v{V_OST}")
            e(f"s_bitcmp1_b32 s{S_J}, 0\ns_cselect_b32 s{S_Q}, 3, 4\nv_lshlrev_b32 v5, s{S_Q}, v{V_LANE}\nv_add_u32 v5, s{S_T}, v5")
            e(f"s_mov_b32 s{S_MK}, 0xffff0000")

        def red_loads(ps, regs):
            for k in range(3):
                for src in range(8):
                    rreg[(k, src)] = regs[k * 8 + src]
                    e(f"s_mov_b32 s{S_Q}, {ps*8*PT + src*PT + k*4096}")
                    self.put(e, [("vm", f"r{ps}{k}", f"buffer_load_dwordx4 {regs[k*8 + src]}, v{4 if k < 2 else 5}, {SRD_WT}, s{S_Q} offen sc1")])

        def out_store(ps, k, lab):
            O = 212 + k * 4
            for h in range(2):
                e(f"s_lshl_b32 s{S_T}, s{S_PB}, 1\ns_add_u32 s{S_T}, s{S_T}, {8*k + h}")
                e(f"s_mul_i32 s{S_Q}, s{S_T}, 37\ns_lshr_b32 s{S_Q}, s{S_Q}, 8")
                e(f"s_mul_i32 s{S_T3}, s{S_Q}, 7\ns_sub_u32 s{S_T3}, s{S_T}, s{S_T3}")
                e(f"s_mul_i32 s{S_T3}, s{S_T3}, 20480\ns_lshl_b32 s{S_Q}, s{S_Q}, 5\ns_add_u32 s{S_T3}, s{S_T3}, s{S_Q}")
                if k == 2 and h == 1:
                    e(f"s_bitcmp1_b32 s{S_J}, 0\ns_cbranch_scc1 {lab}")
                e(f"buffer_store_dwordx2 {vr(O + 2*h, 2)}, v2, {SRD_OUT}, s{S_T3} offen offset:{160*ps}")
                self.vq.issue("st")

        def red_out(ps):
            for k in range(3):
                if k == 2:
                    e(f"s_cmp_lg_u32 s{S_WAVE}, 0\ns_cbranch_scc1 L_out{ps}_done")
                out_store(ps, k, f"L_out{ps}_done")
            e(f"L_out{ps}_done:")

        def red_sums(ps, stores):
            for k in range(3):
                if k == 2:
                    e(f"s_cmp_lg_u32 s{S_WAVE}, 0\ns_cbranch_scc1 L_red{ps}_done")
                need_vm(f"r{ps}{k}")
                A = 196
                for src in range(8):
                    rr = rreg[(k, src)]
                    r = int(rr[2:rr.index(":")])
                    for i in range(4):
                        d = A + 2 * i if src == 0 else A + 8 + 2 * (i & 1)
                        if rr[0] == "a":
                            e(f"v_accvgpr_read_b32 v{A+12+(i&1)}, a{r+i}")
                            x = A + 12 + (i & 1)
                        else:
                            x = r + i
                        e(f"v_lshlrev_b32 v{d}, 16, v{x}")
                        e(f"v_and_b32 v{d+1}, s{S_MK}, v{x}")
                        if src:
                            e(f"v_pk_add_f32 {vr(A+2*i, 2)}, {vr(A+2*i, 2)}, {vr(d, 2)}")
                O = 212 + k * 4
                for i in range(4):
                    e(f"v_cvt_pk_bf16_f32 v{O+i}, v{A+2*i}, v{A+2*i+1}")
                if stores:
                    out_store(ps, k, f"L_red{ps}_done")
            e(f"L_red{ps}_done:")

        done = {}
        for n, (k, ia, t) in enumerate(work):
            done[(seq[k][0], ia * 7 + t)] = n
        pending = [(done[(ps, min(34, 2 * pr + 1))] + 6, ps, pr) for ps in range(2) for pr in range(18)]
        if self.o.burst:
            pending = [(max(x[0], 700) if x[1] == 0 else x[0], x[1], x[2]) for x in pending]
        pending.sort()
        side = []
        flag0_at = None
        for n, (k, ia, t) in enumerate(work):
            ps, st = seq[k]
            if n == self.o.barstep * 35:
                e("s_waitcnt lgkmcnt(0)\ns_barrier")
                state["bar"] = True
                self.stamp(e, 6)
            while pending and pending[0][0] <= n and len(side) < 20 and (len(pool) > 8 or pending[0][1] == 1 or not self.o.burst):
                _, p2, pr = pending.pop(0)
                side += cvt_ops(p2, pr)
                if p2 == 0 and pr == 17 and not self.o.burst:
                    side.append("END0")
            if self.o.burst and n == self.o.burst:
                assert len(held) == 54 and not side
                side += held + ["END0"]
            while ("A", k, ia) not in loc:
                assert a_load(), "pool exhausted (A)"
            need_vm(f"A{k}_{ia}")
            bk = bkey(k, t)
            while bk not in loc:
                assert b_load(n), "pool exhausted (B)"
            need_b(bk)
            d = self.oacc(ps * 35 + ia * 7 + t)
            c = "0" if st == 0 else d
            e(f"{MFMA} {d}, {loc[('A', k, ia)]}, {loc[bk]}, {c}")
            used = 0
            if b_load(n + 30):
                used += 1
            elif (apool or (state["nA"] < self.o.maxA and (len(pool) > 7 or not todoB or not state["bar"]))) and a_load():
                used += 1
            while side and used < 2:
                x = side.pop(0)
                if x == "END0":
                    flag0_at = n + self.o.flagdelay
                elif x[0] == "free":
                    apool.append(x[1])
                elif x[0] == "freev":
                    pool.append(x[1])
                else:
                    self.put(e, [x])
                    used += 1
            if flag0_at is not None and n == flag0_at:
                need_vm("P0")
                flag(0)
            if lastB[bk] == n:
                pool.append(loc[bk])
            if lastA[(k, ia)] == n:
                r = loc[("A", k, ia)]
                (apool if r[0] == "a" else pool).append(r)
                state["nA"] -= 1
            if n == len(work) - self.o.early:
                assert not todoA and not todoB
                red_setup()
                self.poll(e, "pollp0", f"buffer_load_dword v{V_X1}, v3, {SRD_FL}, s{S_T2} offen sc1",
                          [f"v_cmp_ne_u32 vcc, 1, v{V_X1}"], 1)
                state["covered"] = len(self.vq.q) - 1
                self.stamp(e, 11)
                assert len(apool) >= 24, len(apool)
                red_loads(0, [apool.pop(0) for _ in range(24)])
        self.stamp(e, 7)
        for _, p2, pr in pending:
            side += cvt_ops(p2, pr)
        self.put(e, [x for x in side if x[0] != "free"])
        self.stamp(e, 10)
        if self.o.early:
            red_sums(0, stores=False)
            e("s_waitcnt vmcnt(0)")
            flag(1)
            red_out(0)
        else:
            red_setup()
            self.poll(e, "pollp0", f"buffer_load_dword v{V_X1}, v3, {SRD_FL}, s{S_T2} offen sc1",
                      [f"v_mov_b32 v{u}, 1\nbuffer_store_dword v{u}, v{u+5}, {SRD_FL}, 0 offen offset:32 sc1",
                       f"v_cmp_ne_u32 vcc, 1, v{V_X1}"], 1)
            self.stamp(e, 11)
            self.vq.q = []
            state["covered"] = -1
            red_loads(0, [vr(24 + 4 * i) for i in range(24)])
            red_sums(0, stores=True)
        self.stamp(e, 12)
        self.poll(e, "pollp1", f"buffer_load_dword v{V_X1}, v3, {SRD_FL}, s{S_T2} offen offset:32 sc1",
                  [f"v_cmp_ne_u32 vcc, 1, v{V_X1}"], 1)
        self.stamp(e, 9)
        self.vq.q = []
        state["covered"] = -1
        red_loads(1, [vr(24 + 4 * i) for i in range(24)])
        red_sums(1, stores=True)
        self.stamp(e, 14)
        if self.o.stamps:
            e("s_waitcnt vmcnt(0) lgkmcnt(0)")
            self.stamp(e, 8)
            e(f"s_lshl_b32 s{S_T}, s2, 2\ns_add_u32 s{S_T}, s{S_T}, s{S_WAVE}\ns_lshl_b32 s{S_T}, s{S_T}, 7\ns_add_u32 s{S_T}, s{S_T}, {WS_ST}")
            self.srd(e, 76, P_WS, f"s{S_T}", 0, 128)
            e(f"v_lshlrev_b32 v2, 2, v{V_LANE}")
            e(f"buffer_store_dword v{V_STAMP}, v2, {SRD_AUX}, 0 offen")
        e("L_end:\ns_endpgm")
        return e

    def build(self):
        pro = self.prologue()
        q = self.qphase()
        if self.o.qdrop:
            q.ins = [i for i in q.ins if not any(i.text.startswith(d) for d in self.o.qdrop.split(","))]
        conv = self.convert()
        u = V_U
        s0 = Seg("SP0")
        self.stamp(s0, 3)
        self.wo_piece(s0)
        s1 = Seg("SP1")
        self.superphase(s1, 1, pvzero=True, exact=True, slow_label="L_slowP")
        self.srd(s1, 76, P_DBG, 0, 0, 256)
        s1(f"v_mov_b32 v{u}, 1\nv_mov_b32 v{V_X1}, s2")
        self.put(s1, [("wait", "wst")])
        s1("s_barrier")
        s1(f"s_cmp_lg_u32 s{S_WAVE}, 0\ns_cbranch_scc1 L_nopub")
        s1(f"buffer_store_byte v{u}, v{V_X1}, {SRD_AUX}, 0 offen sc1")
        s1("L_nopub:")
        s1(f"s_mov_b32 s{S_CNT}, 2")
        le = Seg("SPe")
        le("L_loop:")
        self.superphase(le, 2, slow_label="L_slowE")
        lo = Seg("SPo")
        self.superphase(lo, 3, slow_label="L_slowO")
        lo(f"s_add_u32 s{S_CNT}, s{S_CNT}, 2\ns_cmp_lt_u32 s{S_CNT}, 16\ns_cbranch_scc1 L_loop")
        if self.o.lim >= 0:
            from asmlib import Ins
            for seg in (le, lo):
                new = []
                cnt = 0
                for i in seg.ins:
                    if i.kind == "vmem" and i.lds:
                        if cnt % self.o.limk == 0:
                            lab = self.label("th")
                            new += [Ins("s_bitcmp1_b32 s2, 0"), Ins(f"s_cbranch_scc1 {lab}"),
                                    Ins(f"s_waitcnt vmcnt({self.o.lim})"), Ins(f"{lab}:")]
                        cnt += 1
                    new.append(i)
                seg.ins = new
        tl = Seg("SPtail")
        tl(f"v_lshlrev_b32 v{u+3}, 2, v{V_LANE}")
        tl(f"buffer_load_dword v{u+2}, v{u+3}, {SRD_AUX}, 0 offen sc1")
        tl("s_waitcnt lgkmcnt(0)")
        self.superphase(tl, 16, qk=False)
        fin = self.tail()
        slow = self.slowpath()
        n = fix_path([pro, q, conv, s0, s1, le, lo, tl, fin], verbose=self.o.verbose)
        n += fix_path([slow], verbose=self.o.verbose)
        for path in ([lo, le, lo, le], [lo, tl]):
            fix_path(path, insert=False)
        print(f"inserted {n} wait states", file=sys.stderr)
        return [pro, q, conv, s0, s1, le, lo, tl, fin, slow]


HEADER = """; Kernarg layout for this problem (64 bytes, ptrs only, base s[0:1]):
; One launch, one workgroup per CU, one wave per (batch, head): Q projection, flash attention over an
"""


def main():
    ap = argparse.ArgumentParser()
    ap.add_argument("-o", default="standalone__gqa_block_cached__near_ridge.s")
    ap.add_argument("--kvflags", default="nt")
    ap.add_argument("--thresh", type=float, default=1048576.0)
    ap.add_argument("--stamps", type=int, default=0)
    ap.add_argument("--verbose", action="store_true")
    ap.add_argument("--rotb", type=int, default=1)
    ap.add_argument("--wi", type=int, default=1)
    ap.add_argument("--barstep", type=int, default=6)
    ap.add_argument("--l2pf", default="")
    ap.add_argument("--l2flags", default="")
    ap.add_argument("--burst", type=int, default=0)
    ap.add_argument("--early", type=int, default=0)
    ap.add_argument("--nb", type=int, default=4)
    ap.add_argument("--lim", type=int, default=-1)
    ap.add_argument("--limk", type=int, default=4)
    ap.add_argument("--pfsteps", default="")
    ap.add_argument("--pfpos", type=int, default=55)
    ap.add_argument("--codepf", type=int, default=57344)
    ap.add_argument("--maxA", type=int, default=16)
    ap.add_argument("--flagdelay", type=int, default=140)
    ap.add_argument("--oi", type=int, default=1)
    ap.add_argument("--oj", type=int, default=1)
    ap.add_argument("--rb", type=int, default=0)
    ap.add_argument("--preA", type=int, default=8)
    ap.add_argument("--maxq", type=int, default=40)
    ap.add_argument("--pollstep", type=int, default=2)
    ap.add_argument("--qab", default="")
    ap.add_argument("--qdrop", default="")
    ap.add_argument("--wj", type=int, default=1)
    ap.add_argument("--wostep", type=int, default=3)
    ap.add_argument("--nokv", type=int, default=0)
    ap.add_argument("--pflo", type=int, default=0)
    ap.add_argument("--pfhi", type=int, default=19)
    ap.add_argument("--fragstep", type=int, default=10)
    ap.add_argument("--pflags", default="sc1")
    ap.add_argument("--pf0", type=int, default=0)
    ap.add_argument("--vspan", type=int, default=60)
    ap.add_argument("--spin", type=int, default=200000)
    o = ap.parse_args()
    segs = Gen(o).build()
    out = [HEADER.rstrip("\n")]
    out.append("; @launch grid=(256,1,1) block=(256,1,1) lds=163840")
    out.append('.amdgcn_target "amdgcn-amd-amdhsa--gfx950"\n.text')
    out.append(f".globl {KN}\n.p2align 8\n.type {KN},@function\n{KN}:")
    for s in segs:
        out.append(f"; ---- {s.name}")
        out.append(s.text())
    out.append('.section .rodata,"a"\n.p2align 6')
    out.append(f""".amdhsa_kernel {KN}
  .amdhsa_next_free_vgpr 512
  .amdhsa_next_free_sgpr 102
  .amdhsa_accum_offset 256
  .amdhsa_group_segment_fixed_size 0
  .amdhsa_kernarg_size 64
  .amdhsa_user_sgpr_count 2
  .amdhsa_user_sgpr_kernarg_segment_ptr 1
  .amdhsa_system_sgpr_workgroup_id_x 1
.end_amdhsa_kernel
""")
    open(o.o, "w").write("\n".join(out))


main()
```

```python
import sys, re, struct, argparse
from asmlib import Seg, fix_path, VmQueue

KN = "standalone__gqa_block_cached__near_ridge_kernel"
MFMA = "v_mfma_f32_16x16x32_bf16"


def f32bits(x):
    return struct.unpack("<I", struct.pack("<f", x))[0]


CSCALE = 1.4426950408889634 * (128 ** -0.5)

S_WAVE = 3
SRD_X, SRD_WQ, SRD_K, SRD_V, SRD_O = "s[4:7]", "s[8:11]", "s[12:15]", "s[16:19]", "s[20:23]"
S_M = [24, 25, 26, 27, 28, 29, 30, 31]
S_T = 32
S_C = 33
S_SEL0, S_SEL1 = 34, 35
S_WQOFF = 36
S_XOFF = 37
S_XLDS = 38
S_T2, S_T3 = 39, 40
S_CNT = 41
S_KOFF, S_KOFF2, S_VOFF, S_VOFF2 = 42, 43, 44, 45
S_OOFF, S_WOFF, S_SPIN, S_CALL = 46, 47, 48, 49
S_RET = 50
S_ROLE = 51
S_G = 34
S_P = 35
S_HB = 36
S_Q = 37
S_WOFF2 = 38
S_DW = [52, 53, 54, 55]
S_DX = [56, 57, 58, 59]
S_WQT, S_XT = 60, 61
S_OFF = 62
S_WLDS = 63
SRD_WT = "s[64:67]"
SRD_FL = "s[68:71]"
SRD_OUT = "s[72:75]"
SRD_AUX = "s[76:79]"
P_X, P_K, P_V, P_WQ, P_WO, P_OUT, P_DBG, P_WS = 80, 82, 84, 86, 88, 90, 92, 94
S_B, S_J, S_H, S_PAIR = 96, 97, 98, 99

V_LANE = 0
V_X1 = 1
V_DMA = 2
V_KA = 6
V_VA = 10
V_U = 18
V_QF = 24
V_VF = 136
V_S = 168
V_P = 184
V_NM = 212
V_L = 240
V_RL = 228
A_KF = 224
V_STAMP = 255
V_RAW = 24
V_XF = 168
V_AF = 224
V_WQ8 = 232
V_XS = 240
V_XRD = 242
V_WT = 244
V_OST = 254
V_L2 = 250
SLOT = 8192
XBUF = 16 * SLOT
NRAW = 3

WS_WT = 32 << 20
WS_FL = 48 << 20

WS_ST = 64 << 20


def vr(b, n=4):
    return f"v[{b}:{b+n-1}]"


def ar(b, n=4):
    return f"a[{b}:{b+n-1}]"


def acc(j, t):
    return (j * 7 + t) * 4


def spread(fillers, ops, lo, hi):
    n = hi - lo
    for k, op in enumerate(ops):
        idx = lo + (k * n) // len(ops)
        fillers.setdefault(idx, []).append(op)


class Gen:
    def __init__(self, opt):
        self.o = opt
        self.vq = VmQueue()
        self.kvflags = opt.kvflags
        self.nlabel = 0

    def label(self, base):
        self.nlabel += 1
        return f"L_{base}{self.nlabel}"

    def stamp(self, seg, i):
        if self.o.stamps:
            seg(f"s_mem{'' if self.o.stamps == 2 else 'real'}time s[100:101]")
            seg("s_waitcnt lgkmcnt(0)")
            seg(f"v_writelane_b32 v{V_STAMP}, s100, {2*i}")
            seg(f"v_writelane_b32 v{V_STAMP}, s101, {2*i+1}")

    def emit_list(self, lst):
        out = []
        for x in lst:
            if isinstance(x, tuple):
                if x[0] == "vm":
                    self.vq.issue(x[1])
                    out.append(x[2])
                elif x[0] == "wait":
                    out.append(f"s_waitcnt vmcnt({min(63, self.vq.wait_for(x[1]))})")
            else:
                out.append(x)
        return out

    def put(self, seg, lst):
        for s in self.emit_list(lst):
            seg(s)

    def interleave(self, seg, mfmas, fillers):
        self.put(seg, fillers.get(-1, []))
        for i, m in enumerate(mfmas):
            seg(m)
            self.put(seg, fillers.get(i, []))

    @staticmethod
    def srd(p, d, base, off_lo, off_hi, nrec):
        p(f"s_add_u32 s{d}, s{base}, {off_lo}\ns_addc_u32 s{d+1}, s{base+1}, {off_hi}")
        p(f"s_mov_b32 s{d+2}, {nrec}\ns_mov_b32 s{d+3}, 0x20000")

    def prologue(self):
        p = Seg("prologue")
        p("s_cmp_ge_u32 s2, 256\ns_cbranch_scc1 L_end")
        if self.o.stamps:
            p("s_memrealtime s[76:77]")
        p(f"s_load_dwordx16 s[{P_X}:{P_X+15}], s[0:1], 0")
        n, g, t0, t1 = V_U, V_U + 1, V_U + 2, V_U + 3
        p(f"v_lshrrev_b32 v{t0}, 6, v0")
        p(f"v_mov_b32 v{V_X1}, v0")
        p(f"v_and_b32 v{V_LANE}, 63, v0")
        p(f"v_readfirstlane_b32 s{S_WAVE}, v{t0}")
        if self.o.stamps:
            p(f"v_mov_b32 v{V_STAMP}, 0")
        if self.o.codepf:
            p("s_getpc_b64 s[72:73]")
            p("s_and_b32 s72, s72, 0xffffff00")
            p(f"s_mov_b32 s74, {self.o.codepf}\ns_mov_b32 s75, 0x20000")
            p(f"s_lshr_b32 s{S_T}, s2, 3\ns_lshl_b32 s{S_T}, s{S_T}, 12")
            p(f"v_lshlrev_b32 v{t1}, 4, v{V_X1}")
            p(f"buffer_load_dwordx4 {ar(A_KF)}, v{t1}, {SRD_OUT}, s{S_T} offen")
        nb = self.o.nb
        lnb = nb.bit_length() - 1
        nhg = 32 // nb
        lhg = nhg.bit_length() - 1
        xh = 8 // nhg
        lxh = xh.bit_length() - 1
        p(f"s_and_b32 s{S_T2}, s2, 7\ns_lshr_b32 s{S_T3}, s2, 3")
        p(f"s_lshr_b32 s{S_B}, s{S_T2}, {lxh}\ns_lshl_b32 s{S_B}, s{S_B}, {lnb}\ns_lshr_b32 s{S_T}, s{S_T3}, {lhg}\ns_add_u32 s{S_B}, s{S_B}, s{S_T}")
        p(f"s_and_b32 s{S_J}, s{S_T2}, {xh-1}\ns_lshl_b32 s{S_J}, s{S_J}, {lhg}\ns_and_b32 s{S_T}, s{S_T3}, {nhg-1}\ns_add_u32 s{S_J}, s{S_J}, s{S_T}")
        p(f"s_lshl_b32 s{S_H}, s{S_J}, 2\ns_add_u32 s{S_H}, s{S_H}, s{S_WAVE}")
        p(f"s_lshl_b32 s{S_PAIR}, s{S_B}, 5\ns_add_u32 s{S_PAIR}, s{S_PAIR}, s{S_H}")
        p(f"v_and_b32 v{n}, 15, v{V_LANE}")
        p(f"v_lshrrev_b32 v{g}, 4, v{V_LANE}")
        p(f"v_lshlrev_b32 v{t0}, 16, v{g}")
        p(f"v_lshl_add_u32 v{V_WQ8}, v{n}, 4, v{t0}")
        for i in range(1, 8):
            p(f"v_add_u32 v{V_WQ8+i}, {i*8192}, v{V_WQ8}")
        p(f"v_lshrrev_b32 v{t0}, 4, v{V_LANE}")
        p(f"v_and_b32 v{t1}, 7, v{V_LANE}")
        p(f"v_xor_b32 v{t0}, v{t0}, v{t1}")
        p(f"v_lshlrev_b32 v{t0}, 4, v{t0}")
        p(f"v_lshrrev_b32 v{t1}, 3, v{V_LANE}")
        p(f"s_lshl_b32 s{S_T}, s{S_WAVE}, 5")
        p(f"v_add_u32 v{t1}, s{S_T}, v{t1}")
        p(f"v_mul_u32_u24 v{t1}, 1280, v{t1}")
        p(f"v_add_u32 v{V_XS}, v{t0}, v{t1}")
        p(f"v_xor_b32 v{V_XS+1}, 64, v{V_XS}")
        p(f"v_add_u32 v{V_XS+1}, 10240, v{V_XS+1}")
        p(f"s_lshl_b32 s{S_XLDS}, s{S_WAVE}, 12\ns_add_u32 s{S_XLDS}, s{S_XLDS}, {XBUF}")
        p(f"s_and_b32 s{S_T}, s2, 7\ns_mul_i32 s{S_T}, s{S_T}, {self.o.rotb}")
        p(f"s_mul_i32 s{S_T3}, s{S_T}, 13108\ns_lshr_b32 s{S_T3}, s{S_T3}, 16\ns_mul_i32 s{S_T3}, s{S_T3}, 5\ns_sub_u32 s{S_T}, s{S_T}, s{S_T3}")
        p(f"s_lshl_b32 s{S_WQOFF}, s{S_T}, 20\ns_lshl_b32 s{S_XOFF}, s{S_T}, 8")
        p(f"s_mul_i32 s{S_T}, s{S_B}, {self.o.wi}\ns_mul_i32 s{S_T3}, s{S_J}, {self.o.wj}\ns_add_u32 s{S_T}, s{S_T}, s{S_T3}")
        p(f"s_and_b32 s{S_OFF}, s{S_T}, 3")
        for c in range(4):
            p(f"s_xor_b32 s{S_T3}, s{S_OFF}, {c}\ns_lshl_b32 s{S_DW[c]}, s{S_T3}, 18")
        p(f"s_lshr_b32 s{S_T3}, s{S_OFF}, 1\ns_lshl_b32 s{S_DX[0]}, s{S_T3}, 7\ns_xor_b32 s{S_DX[1]}, s{S_DX[0]}, 128")
        p(f"s_mul_i32 s{S_T3}, s{S_B}, 143360")
        p(f"s_lshl_b32 s{S_T}, s{S_H}, 8")
        p("s_waitcnt lgkmcnt(0)")
        self.srd(p, 4, P_X, f"s{S_T3}", 0, 143360)
        p(f"s_add_u32 s8, s{P_WQ}, s{S_T}\ns_addc_u32 s9, s{P_WQ+1}, 0\ns_sub_u32 s10, 5242880, s{S_T}\ns_mov_b32 s11, 0x20000")
        if "x" in self.o.qab:
            p("s_mov_b32 s6, 0")
        if "w" in self.o.qab:
            p("s_mov_b32 s10, 0")
        lst = [f"s_add_u32 s{S_WQT}, s{S_WQOFF}, s{S_DW[0]}"]
        lst += self.x_dma(0)
        lst += self.wq_loads(0)
        lst += self.x_dma(1)
        for s in range(1, NRAW - 1):
            lst += self.wq_loads(s)
        self.put(p, lst)
        self.stamp(p, 13)
        if self.o.stamps:
            p(f"v_writelane_b32 v{V_STAMP}, s76, 0\nv_writelane_b32 v{V_STAMP}, s77, 1")
        p(f"s_lshl_b32 s{S_T}, s{S_PAIR}, 17\ns_lshr_b32 s{S_T3}, s{S_PAIR}, 15")
        nr = 0 if self.o.nokv else 131072
        self.srd(p, 12, P_K, f"s{S_T}", f"s{S_T3}", nr)
        self.srd(p, 16, P_V, f"s{S_T}", f"s{S_T3}", nr)
        p(f"s_lshl_b32 s{S_M[0]}, s{S_WAVE}, 15")
        for r in range(1, 8):
            p(f"s_add_u32 s{S_M[r]}, s{S_M[0]}, {r*4096}")
        for i in range(4):
            p(f"v_add_u32 v{t0}, {4*i}, v{g}")
            p(f"v_and_b32 v{t1}, 7, v{t0}")
            p(f"v_lshlrev_b32 v{t1}, 1, v{t1}")
            p(f"v_lshrrev_b32 v{t0}, 3, v{t0}")
            p(f"v_or_b32 v{t0}, v{t0}, v{t1}")
            p(f"v_xor_b32 v{t0}, v{t0}, v{n}")
            p(f"v_lshlrev_b32 v{t0}, 4, v{t0}")
            p(f"v_lshl_add_u32 v{V_DMA+i}, v{g}, 8, v{t0}")
        for k in range(self.o.pf0):
            self.put(p, self.pf_dma(k))
        self.srd(p, 68, P_WS, WS_FL, 0, 8192)
        p(f"s_lshl_b32 s{S_T}, s{S_B}, 8\ns_lshl_b32 s{S_T3}, s{S_WAVE}, 6\ns_add_u32 s{S_T}, s{S_T}, s{S_T3}\ns_lshl_b32 s{S_T3}, s{S_J}, 2\ns_add_u32 s{S_T}, s{S_T}, s{S_T3}")
        p(f"v_mov_b32 v{t0}, 0\nv_mov_b32 v{t1}, s{S_T}")
        self.put(p, [("vm", "zf", f"buffer_store_dword v{t0}, v{t1}, {SRD_FL}, 0 offen sc1")])
        self.put(p, [("vm", "zf", f"buffer_store_dword v{t0}, v{t1}, {SRD_FL}, 0 offen offset:32 sc1")])
        p(f"s_lshl_b32 s{S_T}, s2, 2\ns_add_u32 s{S_T}, s{S_T}, s{S_WAVE}")
        p(f"s_lshr_b32 s{S_T2}, s{S_T}, 3\ns_and_b32 s{S_T3}, s{S_T}, 7")
        p(f"s_mul_i32 s{S_T}, s{S_T2}, 40960\ns_mul_i32 s{S_CNT}, s{S_T3}, 160\ns_add_u32 s{S_T}, s{S_T}, s{S_CNT}")
        p(f"s_add_u32 s76, s{P_WO}, s{S_T}\ns_addc_u32 s77, s{P_WO+1}, 0\ns_sub_u32 s78, 40960, s{S_CNT}\ns_mov_b32 s79, 0x20000")
        p(f"s_lshl_b32 s{S_T}, s{S_T3}, 7\ns_add_u32 s{S_T}, s{S_T}, s{S_T2}\ns_mul_i32 s{S_T}, s{S_T}, 5120\ns_add_u32 s{S_T}, s{S_T}, {WS_WT}")
        self.srd(p, 64, P_WS, f"s{S_T}", 0, 5120)
        if "o" in self.o.qab:
            p("s_mov_b32 s78, 0\ns_mov_b32 s66, 0")
        p(f"s_movk_i32 s{S_T}, 6554")
        for i in range(5):
            p(f"v_add_u32 v{t0}, {64*i}, v{V_LANE}")
            p(f"v_mul_lo_u32 v{t1}, v{t0}, s{S_T}")
            p(f"v_lshrrev_b32 v{t1}, 16, v{t1}")
            p(f"v_mul_u32_u24 v{t1}, 1120, v{t1}")
            p(f"v_lshl_add_u32 v{V_WT+i}, v{t0}, 4, v{t1}")
        p(f"v_lshrrev_b32 v{t0}, 2, v{V_LANE}")
        p(f"v_mul_u32_u24 v{t0}, 160, v{t0}")
        p(f"v_and_b32 v{t1}, 3, v{V_LANE}")
        p(f"v_lshl_add_u32 v{t0}, v{t1}, 3, v{t0}")
        p(f"s_lshl_b32 s{S_WLDS}, s{S_WAVE}, 13\ns_add_u32 s{S_WLDS}, s{S_WLDS}, {XBUF}")
        p(f"v_add_u32 v{V_X1}, s{S_WLDS}, v{t0}")
        p(f"v_lshrrev_b32 v{t0}, 1, v{n}")
        p(f"v_xor_b32 v{t0}, v{t0}, v{g}")
        p(f"v_lshlrev_b32 v{t0}, 4, v{t0}")
        p(f"v_lshl_add_u32 v{t0}, v{n}, 7, v{t0}")
        p(f"v_add_u32 v{t0}, {XBUF}, v{t0}")
        p(f"s_and_b32 s{S_T}, s{S_OFF}, 1\ns_lshl_b32 s{S_T}, s{S_T}, 6")
        p(f"v_xor_b32 v{V_XRD}, s{S_T}, v{t0}")
        p(f"v_xor_b32 v{V_XRD+1}, 64, v{V_XRD}")
        p(f"v_and_b32 v{t1}, 7, v{n}")
        p(f"v_lshlrev_b32 v{t1}, 1, v{t1}")
        p(f"v_lshrrev_b32 v{t0}, 3, v{n}")
        p(f"v_or_b32 v{t0}, v{t0}, v{t1}")
        p(f"v_lshlrev_b32 v{t1}, 2, v{g}")
        p(f"v_xor_b32 v{t0}, v{t0}, v{t1}")
        p(f"v_lshlrev_b32 v{t0}, 4, v{t0}")
        p(f"v_lshl_add_u32 v{t0}, v{n}, 8, v{t0}")
        p(f"v_add_u32 v{V_KA}, s{S_M[0]}, v{t0}")
        for kk in range(1, 4):
            p(f"v_xor_b32 v{V_KA+kk}, {kk << 4}, v{V_KA}")
        m_, c_ = n, g
        p(f"v_lshrrev_b32 v{m_}, 2, v{V_LANE}")
        p(f"v_and_b32 v{c_}, 3, v{V_LANE}")
        p(f"v_and_b32 v{t1}, 7, v{m_}")
        p(f"v_lshlrev_b32 v{t1}, 1, v{t1}")
        p(f"v_lshrrev_b32 v{t0}, 3, v{m_}")
        p(f"v_or_b32 v{t0}, v{t0}, v{t1}")
        p(f"v_lshrrev_b32 v{t1}, 1, v{c_}")
        p(f"v_xor_b32 v{t0}, v{t0}, v{t1}")
        p(f"v_lshlrev_b32 v{t0}, 4, v{t0}")
        p(f"v_lshl_add_u32 v{t0}, v{m_}, 8, v{t0}")
        p(f"v_and_b32 v{t1}, 1, v{c_}")
        p(f"v_lshl_add_u32 v{t0}, v{t1}, 3, v{t0}")
        p(f"v_add_u32 v{V_VA}, s{S_M[0]}, v{t0}")
        for d in range(1, 8):
            p(f"v_xor_b32 v{V_VA+d}, {d << 5}, v{V_VA}")
        p(f"v_lshlrev_b32 v{V_OST}, 4, v{V_LANE}")
        p(f"v_lshlrev_b32 v{V_L2}, 7, v{V_LANE}")
        p(f"s_mov_b32 s{S_C}, {f32bits(CSCALE):#x}")
        p(f"s_mov_b32 s{S_SEL0}, 0x05040100\ns_mov_b32 s{S_SEL1}, 0x07060302")
        self.put(p, [("wait", "x0")])
        p("s_barrier")
        for t in range(7):
            p(f"ds_read_b128 {vr(V_XF + t*4)}, v{V_XRD} offset:{t*2048}")
        self.put(p, [("wait", "wq0")])
        for s in self.perms(0, 0):
            p(s)
        self.stamp(p, 1)
        return p

    def x_dma(self, m):
        out = [f"s_add_u32 s{S_XT}, s{S_XOFF}, s{S_DX[m % 2]}"]
        for i in range(4):
            out.append(f"s_add_u32 m0, s{S_XLDS}, {(m % 2)*16384 + i*1024}")
            if i == 2:
                out.append(f"s_add_u32 s{S_XT}, s{S_XT}, 20480")
            out.append(("vm", f"x{m}", f"buffer_load_dwordx4 v{V_XS + (i & 1)}, {SRD_X}, s{S_XT} offen lds"))
        if m % 2 == 1:
            out += [f"s_add_u32 s{S_XOFF}, s{S_XOFF}, 256", f"s_cmp_ge_u32 s{S_XOFF}, 1280", f"s_cselect_b32 s{S_XOFF}, 0, s{S_XOFF}"]
        return out

    def wq_loads(self, s):
        base = V_RAW + (s % NRAW) * 32
        out = []
        for i in range(8):
            out.append(("vm", f"wq{s}", f"buffer_load_dwordx4 {vr(base + i*4)}, v{V_WQ8+i}, {SRD_WQ}, s{S_WQT} offen"))
        if s % 4 == 3:
            out += [f"s_add_u32 s{S_WQOFF}, s{S_WQOFF}, {8192*128}",
                    f"s_cmp_ge_u32 s{S_WQOFF}, 5242880", f"s_cselect_b32 s{S_WQOFF}, 0, s{S_WQOFF}"]
        out.append(f"s_add_u32 s{S_WQT}, s{S_WQOFF}, s{S_DW[(s + 1) % 4]}")
        return out

    def perms(self, s, j):
        base = V_RAW + (s % NRAW) * 32
        d = V_AF + (j & 1) * 4
        sel = S_SEL1 if (j & 1) else S_SEL0
        return [f"v_perm_b32 v{d+r}, v{base + (2*r+1)*4 + (j >> 1)}, v{base + (2*r)*4 + (j >> 1)}, s{sel}" for r in range(4)]

    def pf_dma(self, k):
        q, i = k // 8, k % 8
        srd = SRD_K if q % 2 == 0 else SRD_V
        tag = ("K" if q % 2 == 0 else "V") + str(q // 2)
        out = [f"s_mov_b32 m0, s{S_M[(q % 4)*2 + i // 4]}"]
        if i % 4 == 0:
            out.append(f"s_movk_i32 s{S_KOFF}, {(q // 2)*8192 + (i // 4)*4096}")
        out.append(("vm", tag, f"buffer_load_dwordx4 v{V_DMA + i % 4}, {srd}, s{S_KOFF} offen offset:{(i % 4)*1024} {self.kvflags} lds"))
        return out

    def qstep(self, seg, s, pf):
        NS = 20
        xf = V_XF + (s & 1) * 28
        xn = V_XF + ((s + 1) & 1) * 28
        mf = []
        for j in range(8):
            for t in range(7):
                c = "0" if s == 0 else ar(acc(j, t))
                mf.append(f"{MFMA} {ar(acc(j,t))}, {vr(V_AF+(j&1)*4)}, {vr(xf+t*4)}, {c}")
        fl = {-1: ["s_waitcnt lgkmcnt(0)"]}
        for j in range(8):
            if j < 7:
                ops = self.perms(s, j + 1)
            elif s + 1 < NS:
                ops = [("wait", f"wq{s+1}")] + self.perms(s + 1, 0)
            else:
                ops = []
            if ops:
                spread(fl, ops, j * 7, j * 7 + 4 + (1 if j == 7 else 0))
        groups = []
        if s + NRAW - 1 < NS:
            w = self.wq_loads(s + NRAW - 1)
            groups += [[x] for x in w[:7]] + [w[7:]]
        after = []
        BAR = 20
        bar = (s % 2 == 1)
        nx = 0
        if bar and (s + 3) // 2 < 10:
            x = self.x_dma((s + 3) // 2)
            after += [x[0:3], x[3:5], x[5:8], x[8:]]
            nx = 4
        for k in pf:
            after.append(self.pf_dma(k))
        if s == self.o.fragstep:
            ops = [("wait", "V0")] + self.k_reads(0)
            for d in range(8):
                ops += self.v_read(0, d)
            spread(fl, ops[:13], 1, 20)
            spread(fl, ops[13:], 32, 54)
        if self.o.l2pf:
            steps = [int(x) for x in self.o.l2pf.split(",")]
            for idx, st in enumerate(steps):
                if st == s:
                    srd = SRD_K if idx % 2 == 0 else SRD_V
                    off = (3 + idx // 2) * 8192
                    after.append([f"s_mov_b32 s{S_T2}, {off}",
                                  ("vm", "l2", f"buffer_load_dword v{V_L2+1}, v{V_L2}, {srd}, s{S_T2} offen {self.o.l2flags}")])
        if s == NS - 1:
            for i in range(5):
                after.append([f"s_add_u32 m0, s{S_WLDS}, {i*1024}",
                              ("vm", "wo", f"buffer_load_dwordx4 v{V_WT+i}, {SRD_AUX}, 0 offen lds")])
        pre_n = min(len(groups), 4)
        for gq, pos in zip(groups[:pre_n], [2, 6, 11, 16]):
            for k, op in enumerate(gq):
                fl.setdefault(pos + k, []).append(op)
        if bar:
            mid = [("wait", f"x{(s+1)//2}"), "s_barrier"] if s + 1 < NS else ["s_barrier"]
            fl.setdefault(BAR, []).extend(mid)
        if s + 1 < NS:
            for t in range(7):
                fl.setdefault(BAR + 1 + t + (t + 3) // 4, []).append(
                    f"ds_read_b128 {vr(xn + t*4)}, v{V_XRD + ((s+1) & 1)} offset:{(((s+1)//2) % 2)*16384 + t*2048}")
        rest = after[:nx] + groups[pre_n:] + after[nx:]
        if rest:
            lo, hi = BAR + 5, 53
            last = 0
            for k, gq in enumerate(rest):
                pos = lo + (k * (hi - lo)) // len(rest)
                for kk, op in enumerate(gq):
                    last = max(last, min(55, pos + (kk + 1) // 2))
                    fl.setdefault(last, []).append(op)
        self.interleave(seg, mf, fl)

    def qphase(self):
        q = Seg("qphase")
        lo, hi = self.o.pflo, self.o.pfhi
        sched = {s: [] for s in range(20)}
        NPF = 48
        p0 = self.o.pf0
        stepof = lambda k: lo + ((k - p0) * (hi - lo)) // (NPF - p0)
        for k in range(p0, NPF):
            sched[stepof(k)].append(k)
        assert stepof(max(15, p0)) < self.o.fragstep < stepof(32)
        for s in range(20):
            self.qstep(q, s, sched[s])
        return q

    def conv_ops(self, t):
        ops = []
        k = 0
        for kk in range(4):
            for rho in range(4):
                t0 = V_P + 20 + (k % 4) * 2
                k += 1
                ops += [f"v_accvgpr_read_b32 v{t0}, a{acc(2*rho, t) + kk}",
                        f"v_accvgpr_read_b32 v{t0+1}, a{acc(2*rho+1, t) + kk}",
                        f"v_pk_mul_f32 {vr(t0, 2)}, {vr(t0, 2)}, v[252:253]",
                        f"v_cvt_pk_bf16_f32 v{V_QF + (t*4+kk)*4 + rho}, v{t0}, v{t0+1}"]
        return ops

    def convert(self):
        c = Seg("convert")
        self.stamp(c, 2)
        c(f"s_movk_i32 s{S_KOFF}, 24576\ns_movk_i32 s{S_KOFF2}, 28672\ns_movk_i32 s{S_VOFF}, 24576\ns_movk_i32 s{S_VOFF2}, 28672")
        c(f"v_mov_b32 v252, s{S_C}\nv_mov_b32 v253, s{S_C}")
        for x in self.conv_ops(0):
            c(x)
        for st in range(9):
            A = self.conv_ops(st + 1) if st + 1 <= 6 else []
            B = []
            if st <= 6:
                B += self.qk_mfmas(st, "first")
                if st == 6:
                    kr = self.k_reads(1)
                    B = [("wait", "K1")] + [y for pair in zip(B, kr) for y in pair]
            C = []
            if 1 <= st <= 7:
                f1, f2 = self.softmax_ops(st - 1, "first", 0)
                C = f1 + f2
            streams = [x for x in (B, C, A) if x]
            pos = [0] * len(streams)
            total = sum(len(x) for x in streams)
            out = []
            for n in range(total):
                i = min((j for j in range(len(streams)) if pos[j] < len(streams[j])),
                        key=lambda j: (pos[j] + 0.5) / len(streams[j]))
                out.append(streams[i][pos[i]])
                pos[i] += 1
            self.put(c, out)
        return c

    def wo_piece(self, s0):
        self.put(s0, [("wait", "wo")])
        for tau in range(5):
            for e in range(2):
                s0(f"ds_read_b64_tr_b16 {ar(acc(tau, 6) + e*2, 2)}, v{V_X1} offset:{e*2560 + tau*32}")
        s0(f"v_add_u32 v{V_X1}, 4096, v{V_OST}")
        s0("s_waitcnt lgkmcnt(0)")
        for tau in range(5):
            va, of = (V_OST, tau * 1024) if tau < 4 else (V_X1, 0)
            self.put(s0, [("vm", "wst", f"buffer_store_dwordx4 {ar(acc(tau, 6))}, v{va}, {SRD_WT}, 0 offen offset:{of} sc1")])

    def poll(self, seg, name, load, cmp, sleep):
        seg(f"s_mov_b32 s{S_SPIN}, 0")
        seg(f"L_{name}:")
        seg(load)
        seg("s_waitcnt vmcnt(0)")
        for c in cmp:
            seg(c)
        seg(f"s_cbranch_vccz L_{name}_done")
        seg(f"s_sleep {sleep}\ns_add_u32 s{S_SPIN}, s{S_SPIN}, 1\ns_cmp_lt_u32 s{S_SPIN}, {self.o.spin}\ns_cbranch_scc1 L_{name}")
        seg(f"L_{name}_done:")

    def tile_dma(self, which, blk):
        srd = SRD_K if which == "K" else SRD_V
        o1, o2 = (S_KOFF, S_KOFF2) if which == "K" else (S_VOFF, S_VOFF2)
        mi = (blk & 1) * 4 + (0 if which == "K" else 2)
        out = []
        for h, o in enumerate((o1, o2)):
            out.append(f"s_mov_b32 m0, s{S_M[mi + h]}")
            for i in range(4):
                out.append(("vm", f"{which}{blk}",
                            f"buffer_load_dwordx4 v{V_DMA+i}, {srd}, s{o} offen offset:{i*1024} {self.kvflags} lds"))
            out.append(f"s_add_u32 s{o}, s{o}, 8192")
        return out

    def k_read(self, blk, a, kk):
        return f"ds_read_b128 {ar(A_KF + (a*4+kk)*4)}, v{V_KA+kk} offset:{(blk & 1)*16384 + a*4096}"

    def k_reads(self, blk):
        return [self.k_read(blk, a, kk) for a in range(2) for kk in range(4)]

    def v_read(self, blk, d):
        return [f"ds_read_b64_tr_b16 {vr(V_VF + d*4 + a*2, 2)}, v{V_VA+d} offset:{(blk & 1)*16384 + 8192 + a*4096}" for a in range(2)]

    def softmax_ops(self, t, mode, par):
        S = V_S + (t & 1) * 8
        nm = V_NM + 4 * t
        Ln = V_L + par * 7 + t
        Lo = V_L + (par ^ 1) * 7 + t
        u = V_U
        ops = []
        if mode != "fast":
            ops += [f"v_max3_f32 v{u}, v{S}, v{S+1}, v{S+2}",
                    f"v_max3_f32 v{u}, v{u}, v{S+3}, v{S+4}",
                    f"v_max3_f32 v{u}, v{u}, v{S+5}, v{S+6}",
                    f"v_max_f32 v{u}, v{u}, v{S+7}",
                    f"v_mov_b32 v{u+1}, v{u}",
                    f"v_permlane16_swap_b32 v{u}, v{u+1}",
                    f"v_max_f32 v{u}, v{u}, v{u+1}",
                    f"v_mov_b32 v{u+1}, v{u}",
                    f"v_permlane32_swap_b32 v{u}, v{u+1}",
                    f"v_max_f32 v{u}, v{u}, v{u+1}"]
            if mode == "first":
                ops += [f"v_sub_f32 v{nm+i}, 0, v{u}" for i in range(4)]
                ops += [f"v_mov_b32 v{Lo}, 0"]
            else:
                ops += [f"v_sub_f32 v{u}, 0, v{u}",
                        f"v_min_f32 v{u}, v{u}, v{nm}",
                        f"v_sub_f32 v{u+1}, v{u}, v{nm}",
                        f"v_exp_f32 v{u+1}, v{u+1}"]
                ops += [f"v_mov_b32 v{nm+i}, v{u}" for i in range(4)]
                ops += [f"v_mul_f32 v{Lo}, v{Lo}, v{u+1}"]
                for d in range(8):
                    for r in range(4):
                        a = acc(d, t) + r
                        tt = u + 2 + (r & 1)
                        ops += [f"v_accvgpr_read_b32 v{tt}, a{a}",
                                f"v_mul_f32 v{tt}, v{tt}, v{u+1}",
                                f"v_accvgpr_write_b32 a{a}, v{tt}"]
            ops += [f"v_add_f32 v{S+i}, v{S+i}, v{nm}" for i in range(8)]
        ex = [f"v_exp_f32 v{S+i}, v{S+i}" for i in range(8)]
        cv = [f"v_cvt_pk_bf16_f32 v{V_P + t*4 + r}, v{S+2*r}, v{S+2*r+1}" for r in range(4)]
        a = [f"v_add_f32 v{u+2}, v{S}, v{S+1}",
             f"v_add_f32 v{u+3}, v{S+2}, v{S+3}",
             f"v_add_f32 v{u+4}, v{S+4}, v{S+5}",
             f"v_add_f32 v{Ln}, v{S+6}, v{S+7}",
             f"v_add_f32 v{u+2}, v{u+2}, v{u+3}",
             f"v_add_f32 v{Ln}, v{Ln}, v{u+4}",
             f"v_add_f32 v{u+2}, v{u+2}, v{Lo}",
             f"v_add_f32 v{Ln}, v{Ln}, v{u+2}"]
        first = ops + [ex[0], ex[1], ex[2], a[0], ex[3], ex[4], a[1], ex[5], a[4], ex[6], a[2], ex[7], a[6]]
        second = [cv[0], a[3], cv[1], a[5], cv[2], a[7], cv[3]]
        return first, second

    def softmax_parts(self, t, par):
        S = V_S + (t & 1) * 8
        Ln = V_L + par * 7 + t
        Lo = V_L + (par ^ 1) * 7 + t
        u = V_U
        ex = [f"v_exp_f32 v{S+i}, v{S+i}" for i in range(8)]
        cv = [f"v_cvt_pk_bf16_f32 v{V_P + t*4 + r}, v{S+2*r}, v{S+2*r+1}" for r in range(4)]
        ad = [f"v_add_f32 v{u+2}, v{S}, v{S+1}",
              f"v_add_f32 v{u+3}, v{S+2}, v{S+3}",
              f"v_add_f32 v{u+4}, v{S+4}, v{S+5}",
              f"v_add_f32 v{Ln}, v{S+6}, v{S+7}",
              f"v_add_f32 v{u+2}, v{u+2}, v{u+3}",
              f"v_add_f32 v{Ln}, v{Ln}, v{u+4}",
              f"v_add_f32 v{u+2}, v{u+2}, v{Lo}",
              f"v_add_f32 v{Ln}, v{Ln}, v{u+2}"]
        return ex, ad, cv

    def qk_mfmas(self, t, mode, kreg=None):
        S = V_S + (t & 1) * 8
        out = []
        for a in range(2):
            for kk in range(4):
                if kk == 0:
                    c = vr(V_NM + 4 * t) if mode == "fast" else "0"
                else:
                    c = vr(S + a * 4)
                kf = ar(A_KF + (a * 4 + kk) * 4) if kreg is None else vr(kreg + (a * 4 + kk) * 4)
                out.append(f"{MFMA} {vr(S+a*4)}, {kf}, {vr(V_QF+(t*4+kk)*4)}, {c}")
        return out

    def pv_mfmas(self, t, zero):
        return [f"{MFMA} {ar(acc(d,t))}, {vr(V_VF+d*4)}, {vr(V_P+t*4)}, {'0' if zero else ar(acc(d,t))}" for d in range(8)]

    def superphase(self, seg, j, mode="fast", pv=True, pvzero=False, qk=True, exact=False, slow_label=None):
        par = j & 1
        mf = []
        fl = {}
        pos = {}
        for st in range(8):
            if pv and st >= 1:
                pos[("pv", st - 1)] = len(mf)
                mf += self.pv_mfmas(st - 1, pvzero)
            if qk and st <= 6:
                pos[("qk", st)] = len(mf)
                mf += self.qk_mfmas(st, mode)
        n = len(mf)
        if qk:
            fl[-1] = ["s_waitcnt lgkmcnt(15)" if pv else "s_waitcnt lgkmcnt(0)"]
        if pv:
            p0 = pos[("pv", 0)]
            fl.setdefault(p0 - 1, []).append("s_waitcnt lgkmcnt(8)")
            fl.setdefault(p0 + 3, []).append("s_waitcnt lgkmcnt(0)")
        if qk:
            for t in range(7):
                first, second = self.softmax_ops(t, mode, par)
                if pv:
                    s0 = pos[("pv", t)]
                    s1 = s0 + 16 if t < 6 else n
                else:
                    s0 = pos[("qk", t + 1)] if t < 6 else n - 1
                    s1 = s0 + 8 if t < 6 else n
                if pv and mode == "fast":
                    ex, ad, cv = self.softmax_parts(t, par)
                    if t < 6:
                        plan = {0: [ex[0]], 1: [ex[1]], 2: [ex[2]], 3: [ex[3]], 4: [ex[4]], 5: [ad[0], ad[1]], 6: [ex[5]],
                                8: [ex[6]], 9: [cv[0], ad[4]], 10: [ex[7]], 11: [cv[1], ad[2]], 12: [ad[6], cv[2]],
                                13: [ad[3], cv[3]], 14: [ad[5], ad[7]]}
                        for gp, ops in plan.items():
                            fl.setdefault(s0 + gp, []).extend(ops)
                    else:
                        plan = {0: [ex[0]], 1: [ex[1]], 2: [ex[2]], 3: [ex[3]], 4: [ex[4]], 5: [ex[5]], 6: [ex[6]]}
                        for gp, ops in plan.items():
                            fl.setdefault(s0 + gp, []).extend(ops)
                        tail_second = [ex[7], ad[0], ad[1], ad[2], ad[4], ad[3], ad[6], ad[5], ad[7]]
                        tail_cv = cv
                elif t < 6:
                    lo = s0 + (1 if pv else 0)
                    mid = s0 + (s1 - s0) * 11 // 16 if pv else s0 + (s1 - s0) * 5 // 8
                    spread(fl, first, lo, mid)
                    spread(fl, second, mid, s1)
                else:
                    fl.setdefault(n - 1, []).extend(first)
                    tail_second = second
                    tail_cv = []
        if qk and j >= 1:
            d = self.tile_dma("K", j + 2)
            fl.setdefault(-1, []).append(d[0])
            for gp, ops in enumerate([[d[1]], [d[2]], [d[3]], [d[4], d[6]], [d[5], d[7]], [d[8]], [d[9]], [d[10], d[11]]]):
                fl.setdefault(gp, []).extend(ops)
        if pv and qk:
            d = self.tile_dma("V", j + 1)
            if j == 1:
                d = []
                for h in range(2):
                    d.append(f"s_mov_b32 m0, s{S_WLDS}")
                    d += [("vm", "dummy", f"buffer_load_dwordx4 v{V_DMA+i}, {SRD_V}, s{S_T2} offen offset:{i*1024} lds") for i in range(4)]
                    d.append("s_nop 0")
                fl.setdefault(-1, []).append(f"s_mov_b32 s{S_T2}, 0x40000")
            seq = [[d[0]], [d[1]], [d[2]], [d[3]], [d[4], d[6]], [d[5], d[7]], [d[8]], [d[9]], [d[10], d[11]]]
            gaps = []
            for t in range(5):
                gaps += [pos[("pv", t)] + 7, pos[("pv", t)] + 15]
            for gp, ops in zip(gaps, seq):
                fl.setdefault(gp, []).extend(ops)
        if qk and j < 15:
            q6 = pos[("qk", 6)]
            w = ("wait", f"K{j+1}") if exact else "s_waitcnt vmcnt(24)"
            fl.setdefault(q6 - 1, []).append(w)
            for i in range(8):
                fl.setdefault(q6 + i, []).append(self.k_read(j + 1, i // 4, i % 4))
        tail = []
        if qk:
            tail += tail_second
            if mode == "fast":
                u = V_U + 5
                L = V_L + par * 7
                fl.setdefault(pos[("pv", 5)] + 7 if pv else n - 6, []).extend(
                    [f"v_max3_f32 v{u}, v{L}, v{L+1}, v{L+2}", f"v_max3_f32 v{u}, v{u}, v{L+3}, v{L+4}"])
                tail += [f"v_max3_f32 v{u}, v{u}, v{L+5}, v{L+6}",
                         f"v_cmp_lt_f32 vcc, {f32bits(self.o.thresh):#x}, v{u}"]
            tail += tail_cv
            if j > 0:
                tail.append(("wait", f"V{j}") if exact else "s_waitcnt vmcnt(16)")
            if mode == "fast":
                tail += [f"s_cbranch_vccnz {slow_label}", f"{slow_label}_ret:"]
            if j > 0:
                for d in range(8):
                    tail += self.v_read(j, d)
        if not qk:
            u = V_U
            ops = []
            for t in range(7):
                l = V_L + 7 + t
                ops += [f"v_mov_b32 v{u}, v{l}", "s_nop 0", f"v_permlane16_swap_b32 v{l}, v{u}", f"v_add_f32 v{l}, v{l}, v{u}",
                        f"v_mov_b32 v{u}, v{l}", "s_nop 0", f"v_permlane32_swap_b32 v{l}, v{u}", f"v_add_f32 v{l}, v{l}, v{u}",
                        f"v_rcp_f32 v{V_RL + 2*t}, v{l}", f"v_rcp_f32 v{V_RL + 2*t + 1}, v{l}"]
            spread(fl, ops, 0, 30)
            spread(fl, self.epi_ops(0)[:52], 30, n)
        fl.setdefault(n - 1, []).extend(tail)
        self.interleave(seg, mf, fl)

    def slowpath(self):
        s = Seg("slow")
        def swap():
            for t in range(7):
                s(f"v_swap_b32 v{V_L+t}, v{V_L+7+t}")
        s("L_slowP:\ns_nop 1")
        s(f"s_mov_b32 s{S_RET}, 2\ns_movk_i32 s{S_T}, 8192\ns_branch L_slow_body")
        s("L_slowE:\ns_nop 1")
        swap()
        s(f"s_mov_b32 s{S_RET}, 0\ns_lshl_b32 s{S_T}, s{S_CNT}, 13\ns_branch L_slow_body")
        s("L_slowO:\ns_nop 1")
        s(f"s_mov_b32 s{S_RET}, 1\ns_lshl_b32 s{S_T}, s{S_CNT}, 13\ns_add_u32 s{S_T}, s{S_T}, 8192")
        s("L_slow_body:")
        s(f"v_and_b32 v{V_U}, 15, v{V_LANE}\nv_lshrrev_b32 v{V_U+1}, 4, v{V_LANE}")
        s(f"v_lshlrev_b32 v{V_U}, 8, v{V_U}\nv_lshl_add_u32 v{V_U}, v{V_U+1}, 6, v{V_U}")
        s(f"s_add_u32 s{S_T2}, s{S_T}, 4096\ns_nop 7")
        for a in range(2):
            for kk in range(4):
                s(f"buffer_load_dwordx4 {vr(V_VF + (a*4+kk)*4)}, v{V_U}, {SRD_K}, s{S_T if a == 0 else S_T2} offen offset:{kk*16}")
        s("s_waitcnt vmcnt(0)")
        mf = []
        fl = {}
        for t in range(7):
            mf += self.qk_mfmas(t, "slow", kreg=V_VF)
            first, second = self.softmax_ops(t, "slow", 1)
            if t < 6:
                spread(fl, first + second, (t + 1) * 8, (t + 2) * 8)
            else:
                fl.setdefault(55, []).extend(first + second)
        self.interleave(s, mf, fl)
        s("s_nop 3")
        s(f"s_cmp_eq_u32 s{S_RET}, 1\ns_cbranch_scc1 L_slowO_ret")
        s(f"s_cmp_eq_u32 s{S_RET}, 2\ns_cbranch_scc1 L_slowP_ret")
        swap()
        s("s_nop 1\ns_branch L_slowE_ret")
        return s

    def epi_ops(self, t):
        ops = []
        k = 0
        for uu in range(4):
            dst = V_QF + (uu * 7 + t) * 4
            for half in range(2):
                for pr in range(2):
                    t0 = V_S + (k % 4) * 2
                    k += 1
                    a = acc(2 * uu + half, t) + 2 * pr
                    ops += [f"v_accvgpr_read_b32 v{t0}, a{a}", f"v_accvgpr_read_b32 v{t0+1}, a{a+1}",
                            f"v_pk_mul_f32 {vr(t0, 2)}, {vr(t0, 2)}, {vr(V_RL + 2*t, 2)}",
                            f"v_cvt_pk_bf16_f32 v{dst + half*2 + pr}, v{t0}, v{t0+1}"]
        return ops

    def oacc(self, i):
        return ar(i * 4) if i < 64 else vr(228 + (i - 64) * 4)

    def tail(self):
        e = Seg("tail")
        self.vq.q = []
        u = V_U
        LF = V_L + 7
        PT = 17920
        pool = [vr(136 + 4 * i) for i in range(8)] + [vr(184 + 4 * i) for i in range(11)]
        late_pool = [vr(168 + 4 * i) for i in range(4)]
        apool = []
        loc = {}
        for uu in range(4):
            for t in range(7):
                loc[("B", "own", uu, t)] = vr(V_QF + (uu * 7 + t) * 4)
        seq = [(0, st) for st in range(16)] + [(1, st) for st in range(16)]
        work = []
        for k in range(32):
            if k == 28:
                for ia in range(5):
                    for kk in range(k, k + 4):
                        work += [(kk, ia, t) for t in range(7)]
            elif k in (29, 30, 31):
                continue
            else:
                work += [(k, ia, t) for ia in range(5) for t in range(7)]

        def bkey(k, t):
            ps, st = seq[k]
            return ("B", "own", st, t) if st < 4 else ("B", ps, st, t)
        lastA, lastB, firstA, firstB = {}, {}, {}, {}
        for n, (k, ia, t) in enumerate(work):
            lastA[(k, ia)] = n
            lastB[bkey(k, t)] = n
            firstA.setdefault((k, ia), n)
            firstB.setdefault(bkey(k, t), n)
        todoA = sorted(firstA, key=firstA.get)
        todoB = [x for x in sorted(firstB, key=firstB.get) if x[1] != "own"]
        state = {"covered": -1, "bar": False, "ds": [], "head": None, "nA": 0}

        def a_load():
            if not todoA or not (pool or apool) or len(self.vq.q) - 1 - state["covered"] >= self.o.maxq:
                return False
            k, i = todoA.pop(0)
            ps, st = seq[k]
            reg = apool.pop(0) if apool else pool.pop(0)
            loc[("A", k, i)] = reg
            state["nA"] += 1
            if state["head"] != (ps, st // 4):
                state["head"] = (ps, st // 4)
                e(f"s_add_u32 s{S_Q}, s{S_WAVE}, {st // 4}\ns_and_b32 s{S_Q}, s{S_Q}, 3\ns_mul_i32 s{S_DW[0]}, s{S_Q}, {4*5120}")
                if ps:
                    e(f"s_add_u32 s{S_DW[0]}, s{S_DW[0]}, {128*5120}")
                for c in range(1, 4):
                    e(f"s_add_u32 s{S_DW[c]}, s{S_DW[0]}, {c*5120}")
            va, of = (V_OST, i * 1024) if i < 4 else (V_X1, 0)
            self.put(e, [("vm", f"A{k}_{i}", f"buffer_load_dwordx4 {reg}, v{va}, {SRD_WT}, s{S_DW[st % 4]} offen offset:{of} sc1")])
            return True

        def b_load(limit):
            if not todoB or not pool or not state["bar"] or firstB[todoB[0]] > limit or len(state["ds"]) >= 14:
                return False
            key = todoB.pop(0)
            _, ps, st, t = key
            reg = pool.pop(0)
            loc[key] = reg
            e(f"ds_read_b128 {reg}, v{V_DMA + st // 4} offset:{((st % 4)*7 + t)*1024}")
            state["ds"].append(key)
            return True

        def need_vm(tag):
            pos = max(n for n, x in enumerate(self.vq.q) if x == tag)
            if pos > state["covered"]:
                e(f"s_waitcnt vmcnt({min(63, len(self.vq.q) - 1 - pos)})")
                state["covered"] = pos

        def need_b(key):
            if key in state["ds"]:
                n = state["ds"].index(key)
                e(f"s_waitcnt lgkmcnt({len(state['ds']) - 1 - n})")
                del state["ds"][:n + 1]

        self.stamp(e, 4)
        e("s_waitcnt vmcnt(0)")
        e(f"v_and_b32 v{u+2}, 0x01010101, v{u+2}\nv_cmp_ne_u32 vcc, 0x01010101, v{u+2}")
        e("s_cbranch_vccz L_pollw_done")
        self.poll(e, "pollw", f"buffer_load_dword v{u+2}, v{u+3}, {SRD_AUX}, 0 offen sc1",
                  [f"v_and_b32 v{u+2}, 0x01010101, v{u+2}", f"v_cmp_ne_u32 vcc, 0x01010101, v{u+2}"], 8)
        e(f"s_lshl_b32 s{S_T}, s{S_WAVE}, 8\ns_lshl_b32 s{S_T2}, s{S_J}, 4\ns_add_u32 s{S_T}, s{S_T}, s{S_T2}\ns_mul_i32 s{S_T}, s{S_T}, 5120\ns_add_u32 s{S_T}, s{S_T}, {WS_WT}")
        self.srd(e, 64, P_WS, f"s{S_T}", 0, 0 if "A" in self.o.qab else 144 * 5120)
        e(f"v_add_u32 v{V_X1}, 4096, v{V_OST}")
        for _ in range(len(pool)):
            a_load()
        for i in range(4):
            e(f"s_add_u32 s{S_T}, s{S_WAVE}, {i}\ns_and_b32 s{S_T}, s{S_T}, 3\ns_lshl_b32 s{S_T}, s{S_T}, 15")
            e(f"v_add_u32 v{V_DMA+i}, s{S_T}, v{V_OST}")
        for t in range(7):
            ops = self.epi_ops(t)
            for x in (ops[52:] if t == 0 else ops):
                e(x)
            for uu in range(4):
                e(f"ds_write_b128 v{V_DMA}, {vr(V_QF + (uu*7 + t)*4)} offset:{(uu*7 + t)*1024}")
        pool.extend(late_pool)
        e(f"s_lshl_b32 s{S_T}, s{S_B}, 3\ns_lshl_b32 s{S_T2}, s{S_WAVE}, 1\ns_add_u32 s{S_T}, s{S_T}, s{S_T2}\ns_lshl_b32 s{S_T}, s{S_T}, 3\ns_add_u32 s{S_T}, s{S_T}, s{S_J}")
        e(f"s_mul_i32 s{S_T}, s{S_T}, {PT}")
        self.srd(e, 20, P_WS, f"s{S_T}", 0, 0 if "P" in self.o.qab else 9 * PT)
        e(f"s_lshl_b32 s{S_T}, s{S_B}, 8\ns_lshl_b32 s{S_T3}, s{S_WAVE}, 6\ns_add_u32 s{S_T}, s{S_T}, s{S_T3}\ns_lshl_b32 s{S_T3}, s{S_J}, 2\ns_add_u32 s{S_T}, s{S_T}, s{S_T3}")
        e(f"v_mov_b32 v{u+5}, s{S_T}\nv_lshlrev_b32 v{u+4}, 3, v{V_LANE}")
        self.stamp(e, 5)

        CV = [6, 10, 6]

        held = []

        def cvt_ops(ps, pair):
            hold = (ps == 0 and self.o.burst)
            if hold:
                gr = pool.pop()
                g = int(gr[2:gr.index(":")])
            else:
                g = CV[pair % 2]
            ops = []
            for h in range(2):
                ti = 2 * pair + h
                if ti >= 35:
                    break
                src = self.oacc(ps * 35 + ti)
                base = int(src[2:src.index(":")])
                for pr in range(2):
                    if src[0] == "a":
                        ta = u + 2 * pr
                        ops += [f"v_accvgpr_read_b32 v{ta}, a{base + 2*pr}", f"v_accvgpr_read_b32 v{ta+1}, a{base + 2*pr + 1}",
                                f"v_cvt_pk_bf16_f32 v{g + 2*h + pr}, v{ta}, v{ta+1}"]
                    else:
                        ops.append(f"v_cvt_pk_bf16_f32 v{g + 2*h + pr}, v{base + 2*pr}, v{base + 2*pr + 1}")
                if ps == 0:
                    ops.append(("free", src))
            off = ps * 8 * PT + pair * 1024
            st = [f"s_mov_b32 s{S_T3}, {off}"]
            if 2 * pair + 1 < 35:
                st.append(("vm", f"P{ps}", f"buffer_store_dwordx4 {vr(g)}, v{V_OST}, {SRD_O}, s{S_T3} offen {self.o.pflags}"))
            else:
                st.append(("vm", f"P{ps}", f"buffer_store_dwordx2 {vr(g, 2)}, v{u+4}, {SRD_O}, s{S_T3} offen {self.o.pflags}"))
            if hold:
                held.extend(st + [("freev", gr)])
            else:
                ops += st
            return ops

        def flag(ps):
            e(f"v_mov_b32 v253, 1")
            self.put(e, [("vm", "fl", f"buffer_store_dword v253, v{u+5}, {SRD_FL}, 0 offen offset:{32*ps} sc1")])

        S_JC, S_PB, S_MK = S_DX[0], S_DX[1], S_DX[2]
        rreg = {}
        RV = [14, 15, 16, 17]
        S_RQ = S_DX[3]

        def red_setup():
            e(f"s_and_b32 s{S_JC}, s{S_J}, 6\ns_and_b32 s{S_PB}, s{S_J}, 1\ns_mul_i32 s{S_PB}, s{S_PB}, 9\ns_add_u32 s{S_PB}, s{S_PB}, s{S_WAVE}")
            e(f"s_lshl_b32 s{S_T}, s{S_B}, 3\ns_add_u32 s{S_T}, s{S_T}, s{S_JC}\ns_lshl_b32 s{S_T2}, s{S_T}, 5\ns_mul_i32 s{S_T}, s{S_T}, {8*PT}")
            self.srd(e, 4, P_WS, f"s{S_T}", 0, 16 * PT)
            e(f"s_mul_i32 s{S_Q}, s{S_JC}, 160\ns_mul_i32 s{S_T}, s{S_B}, 143360\ns_add_u32 s{S_T}, s{S_T}, s{S_Q}")
            e(f"s_add_u32 s72, s{P_OUT}, s{S_T}\ns_addc_u32 s73, s{P_OUT+1}, 0\ns_sub_u32 s74, 143360, s{S_Q}\ns_mov_b32 s75, 0x20000")
            e(f"v_and_b32 v{RV[0]}, 15, v{V_LANE}\nv_lshrrev_b32 v{RV[1]}, 4, v{V_LANE}\nv_mul_u32_u24 v{RV[0]}, 1280, v{RV[0]}\nv_lshl_add_u32 v{RV[0]}, v{RV[1]}, 3, v{RV[0]}")
            e(f"v_and_b32 v{RV[1]}, 7, v{V_LANE}\nv_lshlrev_b32 v{RV[1]}, 2, v{RV[1]}")
            e(f"s_lshl_b32 s{S_T}, s{S_PB}, 10\nv_add_u32 v{RV[2]}, s{S_T}, v{V_OST}")
            e(f"s_bitcmp1_b32 s{S_J}, 0\ns_cselect_b32 s{S_Q}, 3, 4\nv_lshlrev_b32 v{RV[3]}, s{S_Q}, v{V_LANE}\nv_add_u32 v{RV[3]}, s{S_T}, v{RV[3]}")
            e(f"s_mov_b32 s{S_MK}, 0xffff0000")

        def red_loads(ps, regs):
            for k in range(3):
                for src in range(8):
                    rreg[(k, src)] = regs[k * 8 + src]
                    e(f"s_mov_b32 s{S_RQ}, {ps*8*PT + src*PT + k*4096}")
                    self.put(e, [("vm", f"r{ps}{k}", f"buffer_load_dwordx4 {regs[k*8 + src]}, v{RV[2] if k < 2 else RV[3]}, {SRD_X}, s{S_RQ} offen sc1")])

        def out_store(ps, k, lab):
            O = 212 + k * 4
            for h in range(2):
                e(f"s_lshl_b32 s{S_T}, s{S_PB}, 1\ns_add_u32 s{S_T}, s{S_T}, {8*k + h}")
                e(f"s_mul_i32 s{S_Q}, s{S_T}, 37\ns_lshr_b32 s{S_Q}, s{S_Q}, 8")
                e(f"s_mul_i32 s{S_T3}, s{S_Q}, 7\ns_sub_u32 s{S_T3}, s{S_T}, s{S_T3}")
                e(f"s_mul_i32 s{S_T3}, s{S_T3}, 20480\ns_lshl_b32 s{S_Q}, s{S_Q}, 5\ns_add_u32 s{S_T3}, s{S_T3}, s{S_Q}")
                if k == 2 and h == 1:
                    e(f"s_bitcmp1_b32 s{S_J}, 0\ns_cbranch_scc1 {lab}")
                e(f"buffer_store_dwordx2 {vr(O + 2*h, 2)}, v{RV[0]}, {SRD_OUT}, s{S_T3} offen offset:{160*ps}")
                self.vq.issue("st")

        def red_out(ps):
            for k in range(3):
                if k == 2:
                    e(f"s_cmp_lg_u32 s{S_WAVE}, 0\ns_cbranch_scc1 L_out{ps}_done")
                out_store(ps, k, f"L_out{ps}_done")
            e(f"L_out{ps}_done:")

        def red_sums(ps, stores):
            for k in range(3):
                if k == 2:
                    e(f"s_cmp_lg_u32 s{S_WAVE}, 0\ns_cbranch_scc1 L_red{ps}_done")
                need_vm(f"r{ps}{k}")
                A = 196
                for src in range(8):
                    rr = rreg[(k, src)]
                    r = int(rr[2:rr.index(":")])
                    for i in range(4):
                        d = A + 2 * i if src == 0 else A + 8 + 2 * (i & 1)
                        if rr[0] == "a":
                            e(f"v_accvgpr_read_b32 v{A+12+(i&1)}, a{r+i}")
                            x = A + 12 + (i & 1)
                        else:
                            x = r + i
                        e(f"v_lshlrev_b32 v{d}, 16, v{x}")
                        e(f"v_and_b32 v{d+1}, s{S_MK}, v{x}")
                        if src:
                            e(f"v_pk_add_f32 {vr(A+2*i, 2)}, {vr(A+2*i, 2)}, {vr(d, 2)}")
                O = 212 + k * 4
                for i in range(4):
                    e(f"v_cvt_pk_bf16_f32 v{O+i}, v{A+2*i}, v{A+2*i+1}")
                if stores:
                    out_store(ps, k, f"L_red{ps}_done")
            e(f"L_red{ps}_done:")

        done = {}
        for n, (k, ia, t) in enumerate(work):
            done[(seq[k][0], ia * 7 + t)] = n
        pending = [(done[(ps, min(34, 2 * pr + 1))] + 6, ps, pr) for ps in range(2) for pr in range(18)]
        if self.o.burst:
            pending = [(max(x[0], 700) if x[1] == 0 else x[0], x[1], x[2]) for x in pending]
        pending.sort()
        side = []
        rl = []
        red_setup()
        flag0_at = None
        for n, (k, ia, t) in enumerate(work):
            ps, st = seq[k]
            if n == self.o.barstep * 35:
                e("s_waitcnt lgkmcnt(0)\ns_barrier")
                state["bar"] = True
                self.stamp(e, 6)
            while pending and pending[0][0] <= n and len(side) < 20 and (len(pool) > 8 or pending[0][1] == 1 or not self.o.burst):
                _, p2, pr = pending.pop(0)
                side += cvt_ops(p2, pr)
                if p2 == 0 and pr == 17 and not self.o.burst:
                    side.append("END0")
            if self.o.burst and n == self.o.burst:
                assert len(held) == 54 and not side
                side += held + ["END0"]
            while ("A", k, ia) not in loc:
                assert a_load(), "pool exhausted (A)"
            need_vm(f"A{k}_{ia}")
            bk = bkey(k, t)
            while bk not in loc:
                assert b_load(n), "pool exhausted (B)"
            need_b(bk)
            d = self.oacc(ps * 35 + ia * 7 + t)
            c = "0" if st == 0 else d
            e(f"{MFMA} {d}, {loc[('A', k, ia)]}, {loc[bk]}, {c}")
            used = 0
            if b_load(n + 30):
                used += 1
            elif (apool or (state["nA"] < self.o.maxA and (len(pool) > 7 or not todoB or not state["bar"]))) and a_load():
                used += 1
            while side and used < 2:
                x = side.pop(0)
                if x == "END0":
                    flag0_at = n + self.o.flagdelay
                elif x[0] == "free":
                    apool.append(x[1])
                elif x[0] == "freev":
                    pool.append(x[1])
                else:
                    self.put(e, [x])
                    used += 1
            if flag0_at is not None and n == flag0_at:
                need_vm("P0")
                flag(0)
            if lastB[bk] == n:
                pool.append(loc[bk])
            if lastA[(k, ia)] == n:
                r = loc[("A", k, ia)]
                (apool if r[0] == "a" else pool).append(r)
                state["nA"] -= 1
            if n == self.o.c0:
                self.put(e, [("vm", "f0", f"buffer_load_dword v252, v{RV[1]}, {SRD_FL}, s{S_T2} offen sc1")])
            if n == self.o.c0 + 50:
                need_vm("f0")
                e(f"v_cmp_ne_u32 vcc, 1, v252\ns_cbranch_vccz L_pollp0_done")
                self.poll(e, "pollp0", f"buffer_load_dword v252, v{RV[1]}, {SRD_FL}, s{S_T2} offen sc1",
                          [f"v_cmp_ne_u32 vcc, 1, v252"], 1)
                self.stamp(e, 11)
            if n > self.o.c0 + 50 and (n - self.o.c0) % self.o.cstep == 0 and len(rl) < 24 and not todoA and apool:
                i = len(rl)
                kq, src = i // 8, i % 8
                rl.append(apool.pop(0))
                rreg[(kq, src)] = rl[-1]
                e(f"s_mov_b32 s{S_RQ}, {src*PT + kq*4096}")
                self.put(e, [("vm", f"r0{kq}", f"buffer_load_dwordx4 {rl[-1]}, v{RV[2] if kq < 2 else RV[3]}, {SRD_X}, s{S_RQ} offen sc1")])
        self.stamp(e, 7)
        for _, p2, pr in pending:
            side += cvt_ops(p2, pr)
        self.put(e, [x for x in side if x[0] != "free"])
        self.stamp(e, 10)
        assert len(rl) == 24, len(rl)
        red_sums(0, stores=False)
        e("s_waitcnt vmcnt(0)")
        flag(1)
        red_out(0)
        self.stamp(e, 12)
        self.poll(e, "pollp1", f"buffer_load_dword v252, v{RV[1]}, {SRD_FL}, s{S_T2} offen offset:32 sc1",
                  [f"v_cmp_ne_u32 vcc, 1, v252"], 1)
        self.stamp(e, 9)
        self.vq.q = []
        state["covered"] = -1
        red_loads(1, [vr(24 + 4 * i) for i in range(24)])
        red_sums(1, stores=True)
        self.stamp(e, 14)
        if self.o.stamps:
            e("s_waitcnt vmcnt(0) lgkmcnt(0)")
            self.stamp(e, 8)
            e(f"s_lshl_b32 s{S_T}, s2, 2\ns_add_u32 s{S_T}, s{S_T}, s{S_WAVE}\ns_lshl_b32 s{S_T}, s{S_T}, 7\ns_add_u32 s{S_T}, s{S_T}, {WS_ST}")
            self.srd(e, 76, P_WS, f"s{S_T}", 0, 128)
            e(f"v_lshlrev_b32 v2, 2, v{V_LANE}")
            e(f"buffer_store_dword v{V_STAMP}, v2, {SRD_AUX}, 0 offen")
        e("L_end:\ns_endpgm")
        return e

    def build(self):
        pro = self.prologue()
        q = self.qphase()
        if self.o.qdrop:
            q.ins = [i for i in q.ins if not any(i.text.startswith(d) for d in self.o.qdrop.split(","))]
        conv = self.convert()
        u = V_U
        s0 = Seg("SP0")
        self.stamp(s0, 3)
        self.wo_piece(s0)
        s1 = Seg("SP1")
        self.superphase(s1, 1, pvzero=True, exact=True, slow_label="L_slowP")
        self.srd(s1, 76, P_DBG, 0, 0, 256)
        s1(f"v_mov_b32 v{u}, 1\nv_mov_b32 v{V_X1}, s2")
        self.put(s1, [("wait", "wst")])
        s1("s_barrier")
        s1(f"s_cmp_lg_u32 s{S_WAVE}, 0\ns_cbranch_scc1 L_nopub")
        s1(f"buffer_store_byte v{u}, v{V_X1}, {SRD_AUX}, 0 offen sc1")
        s1("L_nopub:")
        s1(f"s_mov_b32 s{S_CNT}, 2")
        le = Seg("SPe")
        le("L_loop:")
        self.superphase(le, 2, slow_label="L_slowE")
        lo = Seg("SPo")
        self.superphase(lo, 3, slow_label="L_slowO")
        lo(f"s_add_u32 s{S_CNT}, s{S_CNT}, 2\ns_cmp_lt_u32 s{S_CNT}, 16\ns_cbranch_scc1 L_loop")
        if self.o.lim >= 0:
            from asmlib import Ins
            for seg in (le, lo):
                new = []
                cnt = 0
                for i in seg.ins:
                    if i.kind == "vmem" and i.lds:
                        if cnt % self.o.limk == 0:
                            lab = self.label("th")
                            new += [Ins("s_bitcmp1_b32 s2, 0"), Ins(f"s_cbranch_scc1 {lab}"),
                                    Ins(f"s_waitcnt vmcnt({self.o.lim})"), Ins(f"{lab}:")]
                        cnt += 1
                    new.append(i)
                seg.ins = new
        tl = Seg("SPtail")
        tl(f"v_lshlrev_b32 v{u+3}, 2, v{V_LANE}")
        tl(f"buffer_load_dword v{u+2}, v{u+3}, {SRD_AUX}, 0 offen sc1")
        tl("s_waitcnt lgkmcnt(0)")
        self.superphase(tl, 16, qk=False)
        fin = self.tail()
        slow = self.slowpath()
        n = fix_path([pro, q, conv, s0, s1, le, lo, tl, fin], verbose=self.o.verbose)
        n += fix_path([slow], verbose=self.o.verbose)
        for path in ([lo, le, lo, le], [lo, tl]):
            fix_path(path, insert=False)
        print(f"inserted {n} wait states", file=sys.stderr)
        return [pro, q, conv, s0, s1, le, lo, tl, fin, slow]


HEADER = """; Kernarg layout for this problem (64 bytes, ptrs only, base s[0:1]):
; Generated by my own script (dev/gen13.py).  One launch, one workgroup per CU, one wave per (batch, head):
;  3. output projection of the CU's own 4 heads (O shared through LDS, wo pre-transposed into d_ws),
"""


def main():
    ap = argparse.ArgumentParser()
    ap.add_argument("-o", default="standalone__gqa_block_cached__near_ridge.s")
    ap.add_argument("--kvflags", default="nt")
    ap.add_argument("--thresh", type=float, default=1048576.0)
    ap.add_argument("--stamps", type=int, default=0)
    ap.add_argument("--verbose", action="store_true")
    ap.add_argument("--rotb", type=int, default=1)
    ap.add_argument("--wi", type=int, default=1)
    ap.add_argument("--barstep", type=int, default=3)
    ap.add_argument("--l2pf", default="")
    ap.add_argument("--l2flags", default="")
    ap.add_argument("--burst", type=int, default=0)
    ap.add_argument("--early", type=int, default=0)
    ap.add_argument("--nb", type=int, default=4)
    ap.add_argument("--lim", type=int, default=-1)
    ap.add_argument("--limk", type=int, default=4)
    ap.add_argument("--pfsteps", default="")
    ap.add_argument("--pfpos", type=int, default=55)
    ap.add_argument("--codepf", type=int, default=57344)
    ap.add_argument("--maxA", type=int, default=10)
    ap.add_argument("--flagdelay", type=int, default=140)
    ap.add_argument("--oi", type=int, default=1)
    ap.add_argument("--oj", type=int, default=1)
    ap.add_argument("--rb", type=int, default=0)
    ap.add_argument("--preA", type=int, default=8)
    ap.add_argument("--maxq", type=int, default=40)
    ap.add_argument("--pollstep", type=int, default=2)
    ap.add_argument("--qab", default="")
    ap.add_argument("--qdrop", default="")
    ap.add_argument("--wj", type=int, default=1)
    ap.add_argument("--wostep", type=int, default=3)
    ap.add_argument("--nokv", type=int, default=0)
    ap.add_argument("--pflo", type=int, default=0)
    ap.add_argument("--pfhi", type=int, default=19)
    ap.add_argument("--fragstep", type=int, default=10)
    ap.add_argument("--c0", type=int, default=860)
    ap.add_argument("--cstep", type=int, default=6)
    ap.add_argument("--pflags", default="sc1")
    ap.add_argument("--pf0", type=int, default=0)
    ap.add_argument("--vspan", type=int, default=60)
    ap.add_argument("--spin", type=int, default=200000)
    o = ap.parse_args()
    segs = Gen(o).build()
    out = [HEADER.rstrip("\n")]
    out.append("; @launch grid=(256,1,1) block=(256,1,1) lds=163840")
    out.append('.amdgcn_target "amdgcn-amd-amdhsa--gfx950"\n.text')
    out.append(f".globl {KN}\n.p2align 8\n.type {KN},@function\n{KN}:")
    for s in segs:
        out.append(f"; ---- {s.name}")
        out.append(s.text())
    out.append('.section .rodata,"a"\n.p2align 6')
    out.append(f""".amdhsa_kernel {KN}
  .amdhsa_next_free_vgpr 512
  .amdhsa_next_free_sgpr 102
  .amdhsa_accum_offset 256
  .amdhsa_group_segment_fixed_size 0
  .amdhsa_kernarg_size 64
  .amdhsa_user_sgpr_count 2
  .amdhsa_user_sgpr_kernarg_segment_ptr 1
  .amdhsa_system_sgpr_workgroup_id_x 1
.end_amdhsa_kernel
""")
    open(o.o, "w").write("\n".join(out))


main()
```
